```python
import torch

def _softmax(x, axis=-1):
    return torch.softmax(x, dim=axis)
def _gelu(x):
    return torch.nn.functional.gelu(x, approximate="tanh")
def _silu(x):
    return torch.nn.functional.silu(x)
def _sigmoid(x):
    return torch.sigmoid(x)
def _layernorm(x, axis=-1, eps=1e-5):
    m = x.mean(dim=axis, keepdim=True)
    v = x.var(dim=axis, keepdim=True, unbiased=False)
    return (x - m) / torch.sqrt(v + eps)
def _scatter_add(tgt, idx, src, axis=0):
    return tgt.clone().index_add_(axis, idx, src)
def _segment_sum(src, seg, n):
    out = torch.zeros((n,) + src.shape[1:], dtype=src.dtype)
    return out.index_add_(0, seg, src)
def _pad(x, pw):
    flat = tuple(v for pair in reversed(pw) for v in pair)
    return torch.nn.functional.pad(x, flat)

kernel_name = 'recurrent_scan__mha_block_cached__dense_activation_relu__prompt'

def setup_inputs():

    _w = (lambda a: (lambda t: t.to(torch.bfloat16) if t.is_floating_point() else t)(torch.as_tensor(a)))
    def _A_setup():
        B, Sq, D = 1, 2048, 1024
        H, Sk, Dh = 32, 2048, 128
        return {
            "x": _w((lambda *s: torch.randn(*s, dtype=torch.bfloat16) * 0.05)(B, Sq, D)),
            "k_cache": _w((lambda *s: torch.randn(*s, dtype=torch.bfloat16) * 0.8)(B, H, Sk, Dh)),
            "v_cache": _w((lambda *s: torch.randn(*s, dtype=torch.bfloat16) * 0.2)(B, H, Sk, Dh)),
            "wq": _w((lambda *s: torch.randn(*s, dtype=torch.bfloat16) * 0.8)(D, H * Dh) * (D ** -0.5)),
            "wo": _w((lambda *s: torch.randn(*s, dtype=torch.bfloat16) * 0.2)(H * Dh, D) * ((H * Dh) ** -0.5)),
        }
    _A_in = _A_setup()

    def _B_setup():
        B, S, D, Dff = 1, 2048, 1024, 3584
        return {
            "x": _w((lambda *s: torch.randn(*s, dtype=torch.bfloat16) * 0.05)(B, S, D)),
            "w1": _w((lambda *s: torch.randn(*s, dtype=torch.bfloat16) * 0.1)(D, Dff)),
            "w2": _w((lambda *s: torch.randn(*s, dtype=torch.bfloat16) * 0.1)(Dff, D)),
        }
    _B_in = _B_setup()

    return {
        "A_x": _A_in["x"],
        "A_k_cache": _A_in["k_cache"],
        "A_v_cache": _A_in["v_cache"],
        "A_wq": _A_in["wq"],
        "A_wo": _A_in["wo"],
        "B_x": _B_in["x"],
        "B_w1": _B_in["w1"],
        "B_w2": _B_in["w2"],
    }

def reference(A_x, A_k_cache, A_v_cache, A_wq, A_wo, B_x, B_w1, B_w2):
    def _A_ref(x, k_cache, v_cache, wq, wo):
        B, Sq, D = x.shape
        H, Dh = 32, 128
        q = (lambda x, *d: x.permute(*d))((x @ wq).reshape(B, Sq, H, Dh), 0, 2, 1, 3)
        scores = torch.einsum("bhqd,bhkd->bhqk", q, k_cache) * (Dh ** -0.5)
        p = _softmax(scores, axis=-1)
        o = torch.einsum("bhqk,bhkd->bhqd", p, v_cache)
        return (lambda x, *d: x.permute(*d))(o, 0, 2, 1, 3).reshape(B, Sq, H * Dh) @ wo

    def _B_ref(x, w1, w2):
        h = torch.einsum("bsd,df->bsf", x, w1)
        zero = torch.zeros_like(h)
        h = torch.maximum(h, zero)
        return torch.einsum("bsf,fd->bsd", h, w2)

    x = A_x
    xn = _layernorm(x, axis=-1)
    s = _A_ref(xn, A_k_cache, A_v_cache, A_wq, A_wo)
    g = _silu(_B_ref(xn, B_w1, B_w2))
    return x + s * g
```

```python
import re

class VM:
    def __init__(s, tag, text): s.tag = tag; s.text = text
class DS:
    def __init__(s, tag, text): s.tag = tag; s.text = text
class WV:
    def __init__(s, *tags): s.tags = tags
class WL:
    def __init__(s, *tags): s.tags = tags

class Prog:
    def __init__(s):
        s.out = []
        s.trace = []
        s.vm = []; s.ds = []
        s.cap = None
        s.nlab = 0
    def _put(s, line, instr=True):
        if s.cap is not None: s.cap.append(line)
        else: s.out.append(line)
        if instr: s.trace.append(line.strip())
    def raw(s, line): s._put(line, False)
    def label(s, n): s._put(n + ":", False)
    def c(s, t): s._put("    ; " + t, False)
    def newlabel(s, p="L"):
        s.nlab += 1; return f"{p}_{s.nlab}"
    def _cnt(s, lst, tags, mx, what):
        idx = -1
        for t in tags:
            k = [i for i, x in enumerate(lst) if x == t]
            assert k, f"{what} wait on unknown tag {t}"
            idx = max(idx, k[-1])
        n = len(lst) - 1 - idx
        return min(n, mx)
    def __call__(s, it):
        if isinstance(it, (list, tuple)):
            for x in it: s(x)
        elif isinstance(it, VM):
            s.vm.append(it.tag); s._put("    " + it.text)
        elif isinstance(it, DS):
            s.ds.append(it.tag); s._put("    " + it.text)
        elif isinstance(it, WV):
            n = s._cnt(s.vm, it.tags, 63, "vm"); s._put(f"    s_waitcnt vmcnt({n})")
        elif isinstance(it, WL):
            n = s._cnt(s.ds, it.tags, 15, "ds"); s._put(f"    s_waitcnt lgkmcnt({n})")
        else:
            for l in it.strip("\n").split("\n"):
                l = l.strip()
                if not l: continue
                if l.endswith(":"): s._put(l, False)
                elif l.startswith(";") or l.startswith("."): s._put("    " + l if l.startswith(";") else l, False)
                else: s._put("    " + l)
    def block(s, mf, gaps):
        for i, m in enumerate(mf):
            s(m)
            s(gaps[i])
    def loop(s, n, body, label, counter, pre_align=True):
        assert s.cap is None
        tail = [f"s_sub_u32 s{counter}, s{counter}, 1", f"s_cmp_lg_u32 s{counter}, 0", f"s_cbranch_scc1 {label}"]
        first = None
        s(f"s_mov_b32 s{counter}, {n}")
        for it in range(n):
            s.cap = []
            body(it)
            txt = s.cap; s.cap = None
            if first is None: first = txt
            else:
                if txt != first:
                    for x, y in zip(first, txt):
                        if x != y: raise AssertionError(f"loop {label} iteration {it} differs: {x!r} vs {y!r}")
                    raise AssertionError(f"loop {label} iteration {it} differs in length")
        if pre_align: s.out.append(".p2align 6")
        s.out.append(label + ":")
        s.out.extend(first)
    def text(s): return "\n".join(s.out) + "\n"

_reg = re.compile(r"\b([vas])(\d+)\b|\b([vas])\[(\d+):(\d+)\]")
def regs(op):
    r = set()
    for m in _reg.finditer(op):
        if m.group(1): r.add((m.group(1), int(m.group(2))))
        else:
            for i in range(int(m.group(4)), int(m.group(5)) + 1): r.add((m.group(3), i))
    if re.search(r"\bvcc\b", op): r.add(("s", "vcc"))
    if re.search(r"\bm0\b", op): r.add(("s", "m0"))
    return r
TRANS = ("v_exp_f32", "v_log_f32", "v_rcp_f32", "v_rsq_f32", "v_sqrt_f32")
def decode(line):
    line = line.split(";")[0].strip()
    p = line.split(None, 1)
    op = p[0]; ops = [x.strip() for x in p[1].split(",")] if len(p) > 1 else []
    d = dict(op=op, w=set(), r=set(), kind="salu", line=line, srcc=set(), ab=set(), data=set(), passes=0, states=1)
    if op == "s_nop": d["states"] = int(ops[0], 0) + 1
    if op.startswith("v_mfma"):
        d["kind"] = "mfma"; d["w"] = regs(ops[0]); d["ab"] = regs(ops[1]) | regs(ops[2]); d["srcc"] = regs(ops[3])
        d["r"] = d["ab"] | d["srcc"]; d["passes"] = 8 if "32x32x16" in op else 4
    elif op.startswith("v_"):
        d["kind"] = "valu"
        if op.startswith("v_cmp"):
            d["w"] = regs(ops[0]); d["r"] = set().union(*[regs(x) for x in ops[1:]])
        elif "swap" in op:
            d["w"] = regs(ops[0]) | regs(ops[1]); d["r"] = set(d["w"])
        else:
            d["w"] = regs(ops[0]); d["r"] = set().union(*[regs(x) for x in ops[1:]]) if len(ops) > 1 else set()
            if op.startswith(("v_fmac", "v_mac")): d["r"] |= d["w"]
            if "_dpp" in op: d["r"] |= d["w"]
            if op.startswith("v_cndmask") and len(ops) == 3: d["r"].add(("s", "vcc"))
    elif op.startswith("ds_"):
        d["kind"] = "ds"
        if "read" in op: d["w"] = regs(ops[0]); d["r"] = regs(ops[1].split()[0])
        else: d["r"] = set().union(*[regs(x.split()[0]) for x in ops])
    elif op.startswith(("buffer_", "global_")):
        d["kind"] = "vmem"
        lds = " lds" in line
        if "load" in op and not lds:
            d["w"] = regs(ops[0]); d["r"] = set().union(*[regs(x) for x in ops[1:]])
        else:
            d["r"] = set().union(*[regs(x) for x in ops])
            if "store" in op: d["data"] = regs(ops[0]) if op.startswith("buffer_") else regs(ops[1])
            if lds: d["r"].add(("s", "m0")); d["lds"] = True
    elif op.startswith("s_"):
        if op.startswith(("s_cmp", "s_cbranch", "s_branch", "s_waitcnt", "s_barrier", "s_nop", "s_endpgm", "s_setprio", "s_sleep")):
            d["r"] = set().union(*[regs(x) for x in ops]) if ops else set()
        else:
            d["w"] = regs(ops[0]) if ops else set(); d["r"] = set().union(*[regs(x) for x in ops[1:]]) if len(ops) > 1 else set()
    return d

def check(trace, name=""):
    ins = [decode(l) for l in trace]
    errs = []
    n = len(ins)
    for i, p in enumerate(ins):
        dist = 0
        for j in range(i + 1, min(n, i + 24)):
            c = ins[j]
            need = 0
            vw = {x for x in p["w"] if x[0] in "va"}
            sw = {x for x in p["w"] if x[0] == "s"}
            if p["kind"] == "valu":
                if c["kind"] == "mfma" and vw & c["r"]: need = max(need, 2)
                if c["kind"] == "valu" and p["op"].startswith(TRANS) and not c["op"].startswith(TRANS) and vw & c["r"]: need = max(need, 1)
                if c["kind"] == "valu" and ("permlane" in c["op"] or "_dpp" in c["op"]) and vw & c["r"]: need = max(need, 2)
                if c["op"].startswith(("v_readlane", "v_readfirstlane")) and vw & c["r"]: need = max(need, 1)
                if c["kind"] == "vmem" and sw & c["r"]: need = max(need, 5)
                if c["kind"] == "valu" and sw & c["r"]: need = max(need, 2)
                if c["kind"] == "salu" and sw & c["r"] and not c["op"].startswith("s_cbranch"): need = max(need, 1)
            if p["kind"] == "mfma":
                big = {4: 8, 8: 12}[p["passes"]]
                if c["kind"] == "mfma":
                    if vw & c["ab"]: need = max(need, big)
                    if vw & c["srcc"] and not (c["srcc"] == p["w"] and c["passes"] == p["passes"]): need = max(need, big - 2)
                    if vw & c["w"] and not (c["srcc"] == p["w"]) : need = max(need, big - 2)
                elif c["kind"] in ("valu", "ds", "vmem"):
                    if vw & (c["r"] | c["w"]): need = max(need, big)
                    if c["kind"] == "valu" and p["srcc"] & c["w"]: need = max(need, {4: 3, 8: 7}[p["passes"]])
            if p["kind"] == "salu" and ("s", "m0") in p["w"] and c.get("lds"): need = max(need, 1)
            if p["kind"] == "vmem" and p["data"] and len(p["data"]) >= 3 and c["w"] & p["data"]:
                need = max(need, 2 if c["kind"] == "valu" else 1)
            if need > dist:
                errs.append(f"{name}: need {need} have {dist}: [{i}] {p['line']}  ->  [{j}] {c['line']}")
            dist += c["states"]
            if dist >= 20: break
    return errs
```

```python
import sys, struct
from fw import *

KN = "recurrent_scan__mha_block_cached__dense_activation_relu__prompt"
XN_BASE = 0x0
H_BASE = 0x400000
O_BASE = 0x1200000
G_BASE = 0x2200000
FLAG_BASE = 0x2600000
WS_BYTES = 0x10000000
def f32(x): return struct.unpack("<I", struct.pack("<f", x))[0]
QSCALE = f32(128 ** -0.5 * 1.4426950408889634)
LOG2E = f32(1.4426950408889634)

def v(b, n=1): return f"v{b}" if n == 1 else f"v[{b}:{b+n-1}]"
def a_(b, n=1): return f"a{b}" if n == 1 else f"a[{b}:{b+n-1}]"

def begin(p, name):
    p.raw(f".globl {name}"); p.raw(".p2align 8"); p.raw(f".type {name},@function"); p.raw(f"{name}:")
def desc(name, vgpr, sgpr, accum):
    return f""".amdhsa_kernel {name}
  .amdhsa_next_free_vgpr {vgpr}
  .amdhsa_next_free_sgpr {sgpr}
  .amdhsa_accum_offset {accum}
  .amdhsa_group_segment_fixed_size 0
  .amdhsa_kernarg_size 88
  .amdhsa_user_sgpr_count 2
  .amdhsa_user_sgpr_kernarg_segment_ptr 1
  .amdhsa_system_sgpr_workgroup_id_x 1
  .amdhsa_float_denorm_mode_32 3
.end_amdhsa_kernel
"""
def srd(p, d, b, nbytes, off_sgpr=None):
    if off_sgpr is None:
        p(f"s_mov_b32 s{d}, s{b}")
        p(f"s_and_b32 s{d+1}, s{b+1}, 0xffff")
        p(f"s_mov_b32 s{d+2}, {nbytes:#x}")
    else:
        p(f"s_add_u32 s{d}, s{b}, s{off_sgpr}")
        p(f"s_addc_u32 s{d+1}, s{b+1}, 0")
        p(f"s_and_b32 s{d+1}, s{d+1}, 0xffff")
        p(f"s_sub_u32 s{d+2}, {nbytes:#x}, s{off_sgpr}")
    p(f"s_mov_b32 s{d+3}, 0x20000")

def wave_sum(p, r):
    for sh in (1, 2, 4, 8):
        p("s_nop 1"); p(f"v_add_f32_dpp v{r}, v{r}, v{r} row_shr:{sh} row_mask:0xf bank_mask:0xf bound_ctrl:0")
    p("s_nop 1"); p(f"v_add_f32_dpp v{r}, v{r}, v{r} row_bcast:15 row_mask:0xa bank_mask:0xf")
    p("s_nop 1"); p(f"v_add_f32_dpp v{r}, v{r}, v{r} row_bcast:31 row_mask:0xc bank_mask:0xf")

def gen_ln():
    p = Prog(); begin(p, "ln_kernel")
    p.c("LayerNorm (no affine), one row per wave; writes xn in MFMA-fragment order; zeroes the hand-off flags")
    p("""s_cmp_ge_u32 s2, 256
    s_cbranch_scc1 L_ln_end
    s_load_dwordx2 s[4:5], s[0:1], 0
    s_load_dwordx2 s[6:7], s[0:1], 80
    v_lshrrev_b32 v1, 6, v0
    v_and_b32 v2, 63, v0
    s_lshl_b32 s3, s2, 3
    v_add_u32 v3, s3, v1
    v_lshlrev_b32 v12, 11, v3
    v_lshrrev_b32 v13, 2, v2
    v_and_b32 v14, 3, v2
    v_lshl_add_u32 v12, v13, 6, v12
    v_lshl_add_u32 v12, v14, 3, v12
    s_waitcnt lgkmcnt(0)""")
    srd(p, 8, 4, 2048 * 1024 * 2)
    srd(p, 12, 6, WS_BYTES)
    p(VM("x", "buffer_load_dwordx2 v[4:5], v12, s[8:11], 0 offen"))
    p(VM("x", "buffer_load_dwordx2 v[6:7], v12, s[8:11], 0 offen offset:32"))
    p(VM("x", "buffer_load_dwordx2 v[8:9], v12, s[8:11], 0 offen offset:1024"))
    p(VM("x", "buffer_load_dwordx2 v[10:11], v12, s[8:11], 0 offen offset:1056"))
    p.c("output offset: t*524288 + kstep*16384 + qb16*1024 + g*256 + (row%16)*16")
    p("""v_lshrrev_b32 v15, 8, v3
    v_lshlrev_b32 v15, 19, v15
    v_lshl_add_u32 v15, v13, 14, v15
    v_bfe_u32 v32, v3, 4, 4
    v_lshl_add_u32 v15, v32, 10, v15
    v_lshl_add_u32 v15, v14, 8, v15
    v_and_b32 v32, 15, v3
    v_lshl_add_u32 v15, v32, 4, v15
    s_mov_b32 s16, 0x40000
    s_cmp_lg_u32 s2, 0
    s_cbranch_scc1 L_ln_noflag
    v_cmp_gt_u32 vcc, 128, v0
    s_nop 1
    s_and_saveexec_b64 s[18:19], vcc
    s_cbranch_execz L_ln_flagdone
    v_lshlrev_b32 v32, 7, v0
    v_mov_b32 v33, 0""")
    p(f"s_mov_b32 s17, {FLAG_BASE:#x}")
    p("buffer_store_dword v33, v32, s[12:15], s17 offen")
    p("L_ln_flagdone:")
    p("s_mov_b64 exec, s[18:19]")
    p("s_waitcnt vmcnt(0)")
    p("L_ln_noflag:")
    p("s_waitcnt vmcnt(0)")
    for i in range(8):
        p(f"v_lshlrev_b32 v{16+2*i}, 16, v{4+i}")
        p(f"v_and_b32 v{17+2*i}, 0xffff0000, v{4+i}")
    p("v_add_f32 v32, v16, v17")
    for i in range(18, 32): p(f"v_add_f32 v32, v32, v{i}")
    wave_sum(p, 32)
    p("""s_nop 0
    v_readlane_b32 s20, v32, 63
    s_nop 1
    v_mov_b32 v33, s20
    v_mul_f32 v33, 0x3a800000, v33""")
    p("v_sub_f32 v34, v16, v33"); p("v_mul_f32 v32, v34, v34")
    for i in range(17, 32):
        p(f"v_sub_f32 v34, v{i}, v33"); p("v_fmac_f32 v32, v34, v34")
    wave_sum(p, 32)
    p("""s_nop 0
    v_readlane_b32 s20, v32, 63
    s_nop 1
    v_mov_b32 v34, s20
    v_mul_f32 v34, 0x3a800000, v34
    v_cvt_pk_bf16_f32 v33, v33, v34
    v_and_b32 v34, 0xffff0000, v33
    v_lshlrev_b32 v33, 16, v33""")
    p(f"v_add_f32 v34, {f32(1e-5):#x}, v34")
    p("""v_cvt_pk_bf16_f32 v34, v34, v34
    v_lshlrev_b32 v34, 16, v34
    v_sqrt_f32 v34, v34
    s_nop 0
    v_cvt_pk_bf16_f32 v34, v34, v34
    v_lshlrev_b32 v34, 16, v34
    v_rcp_f32 v34, v34""")
    for i in range(8):
        p(f"v_sub_f32 v{16+2*i}, v{16+2*i}, v33")
        p(f"v_sub_f32 v{17+2*i}, v{17+2*i}, v33")
        p(f"v_cvt_pk_bf16_f32 v35, v{16+2*i}, v{17+2*i}")
        p(f"v_lshlrev_b32 v{16+2*i}, 16, v35")
        p(f"v_and_b32 v{17+2*i}, 0xffff0000, v35")
        p(f"v_mul_f32 v{16+2*i}, v{16+2*i}, v34")
        p(f"v_mul_f32 v{17+2*i}, v{17+2*i}, v34")
        p(f"v_cvt_pk_bf16_f32 v{4+i}, v{16+2*i}, v{17+2*i}")
    p("buffer_store_dwordx4 v[4:7], v15, s[12:15], 0 offen")
    p("buffer_store_dwordx4 v[8:11], v15, s[12:15], s16 offen")
    p("L_ln_end:")
    p("s_endpgm")
    return p, desc("ln_kernel", 40, 32, 40)

M16 = "v_mfma_f32_16x16x32_bf16"
M32 = "v_mfma_f32_32x32x16_bf16"
def gen_attn(opt):
    p = Prog(); begin(p, "attn_kernel")
    vX = 1; vWd = [2, 3, 4, 5]; vLane = 6; vTmp = 7
    vT = list(range(8, 16)); WF = 16; XF = 32
    vK = list(range(100, 108)); vV = list(range(108, 112)); vKd = [112, 113]; vVd = 114; vSt = 115
    ET = 116; vL = [124, 125]; vLu = [126, 127]
    def S(par, q): return 128 + 32 * par + 16 * q
    def P(par, t, q): return 192 + 16 * par + 8 * t + 4 * q
    def NM(q): return 224 + 16 * q
    def accQ(d, qb): return (d * 4 + qb) * 4
    def accH(i, qb): return 128 + (i * 4 + qb) * 4
    def O(db, q): return (db * 2 + q) * 16
    def QF(q, s): return 128 + (q * 8 + s) * 4
    def KF(s): return 192 + 4 * s
    def VF(f): return 224 + 4 * f
    sW = 3; rXN = 8; rWq = 12; rW1 = 16; rK = 20; rV = 24; rWS = 28
    sX = 36; sWq = 37; sW1 = 38; sCnt = 39; sKV = 40; sM1 = 41; sMK = 42; sMV = 43; sThr = 44; sH = 45; sT = 46
    sHo = 47; sHs = 48; sOo = 49; sVo = 50; sSite = 51
    PH1 = 65536; VRING = 32768

    p.c("fused: [Q | relu(H)] = xn @ [Wq_h | W1 slice]  then flash attention for (head h, 256 query rows)")
    p("""s_cmp_ge_u32 s2, 256
    s_cbranch_scc1 L_a_end
    s_load_dwordx4 s[52:55], s[0:1], 8
    s_load_dwordx2 s[56:57], s[0:1], 24
    s_load_dwordx2 s[58:59], s[0:1], 48
    s_load_dwordx2 s[60:61], s[0:1], 80
    v_lshrrev_b32 v7, 6, v0
    v_and_b32 v6, 63, v0
    s_and_b32 s4, s2, 7
    s_lshr_b32 s5, s2, 3
    v_readfirstlane_b32 s3, v7
    s_lshl_b32 s45, s4, 2
    s_and_b32 s4, s5, 3
    s_add_u32 s45, s45, s4
    s_lshr_b32 s46, s5, 2""")
    p(f"s_lshl_b32 s4, s{sW}, 12")
    p(f"v_lshlrev_b32 v{vX}, 4, v{vLane}")
    p(f"v_mov_b32 v{vSt}, v{vX}")
    p(f"v_add_u32 v{vX}, s4, v{vX}")
    p(f"s_lshl_b32 s{sX}, s{sT}, 19")
    p(f"""v_lshrrev_b32 v96, 4, v{vLane}
    v_bfe_u32 v97, v{vLane}, 1, 3
    v_and_b32 v98, 1, v{vLane}
    s_lshl_b32 s4, s{sW}, 3
    s_and_b32 s5, s{sH}, 1
    s_movk_i32 s6, 7168""")
    for i in range(2):
        p(f"""v_add_u32 v99, {4*i}, v96
        v_xor_b32 v16, v97, v99
        v_add_u32 v99, s4, v99
        v_lshlrev_b32 v17, 13, v99
        v_lshl_add_u32 v17, v16, 5, v17
        v_lshl_add_u32 v{vWd[i]}, v98, 4, v17
        v_add_u32 v18, s5, v16
        v_cmp_eq_u32 vcc, 7, v18
        v_mul_lo_u32 v17, v99, s6
        s_nop 0
        v_cndmask_b32 v18, v18, 0, vcc
        v_cmp_eq_u32 vcc, 7, v16
        v_lshl_add_u32 v17, v18, 5, v17
        v_lshl_add_u32 v17, v98, 4, v17
        v_mov_b32 v18, 0x40000000
        v_cndmask_b32 v{vWd[2+i]}, v17, v18, vcc""")
    p(f"""v_lshrrev_b32 v96, 2, v{vLane}
    v_and_b32 v97, 3, v{vLane}
    v_and_b32 v98, 7, v96
    v_lshlrev_b32 v99, 8, v96
    v_lshl_add_u32 v99, v98, 5, v99
    v_lshl_add_u32 v99, v97, 3, v99
    v_add_u32 v99, {PH1:#x}, v99""")
    for u in range(8): p(f"v_xor_b32 v{vT[u]}, {u*32}, v99")
    p(f"""v_and_b32 v96, 31, v{vLane}
    v_lshrrev_b32 v97, 5, v{vLane}
    v_and_b32 v98, 15, v{vLane}
    v_xor_b32 v97, v97, v98
    v_lshlrev_b32 v99, 8, v96
    v_lshl_add_u32 v99, v97, 4, v99""")
    for s in range(8): p(f"v_xor_b32 v{vK[s]}, {s*32}, v99")
    p(f"""v_lshrrev_b32 v96, 5, v{vLane}
    v_bfe_u32 v97, v{vLane}, 2, 2
    v_lshl_add_u32 v96, v96, 2, v97
    v_lshlrev_b32 v99, 8, v96
    v_lshl_add_u32 v99, v97, 6, v99
    v_bfe_u32 v96, v{vLane}, 4, 1
    v_lshl_add_u32 v99, v96, 5, v99
    v_and_b32 v96, 3, v{vLane}
    v_lshl_add_u32 v99, v96, 3, v99
    v_add_u32 v99, {VRING:#x}, v99""")
    for db in range(4): p(f"v_xor_b32 v{vV[db]}, {db*64}, v99")
    p(f"""v_lshrrev_b32 v96, 4, v{vLane}
    v_and_b32 v97, 15, v{vLane}
    s_lshl_b32 s4, s{sW}, 3
    v_add_u32 v96, s4, v96""")
    for i in range(2):
        p(f"""v_add_u32 v98, {4*i}, v96
        v_and_b32 v98, 15, v98
        v_xor_b32 v98, v98, v97
        v_lshlrev_b32 v99, 8, v96
        v_lshl_add_u32 v{vKd[i]}, v98, 4, v99""")
    p(f"""v_lshrrev_b32 v98, 4, v{vLane}
    v_bfe_u32 v97, v{vLane}, 2, 2
    v_xor_b32 v98, v98, v97
    v_lshlrev_b32 v99, 8, v96
    v_lshl_add_u32 v99, v98, 6, v99
    v_and_b32 v97, 3, v{vLane}
    v_lshl_add_u32 v{vVd}, v97, 4, v99""")
    p(f"""s_lshl_b32 s{sMK}, s{sW}, 11
    s_add_u32 s{sMV}, s{sMK}, {VRING:#x}
    s_add_u32 s{sM1}, s{sMK}, {PH1:#x}
    s_mov_b32 s{sWq}, 0
    s_mov_b32 s{sW1}, 0
    s_mov_b32 s{sKV}, 0
    s_mov_b32 s{sThr}, 0x45800000
    s_waitcnt lgkmcnt(0)""")
    srd(p, rXN, 60, WS_BYTES); srd(p, rWS, 60, WS_BYTES)
    p(f"s_lshl_b32 s4, s{sH}, 8"); srd(p, rWq, 56, 1024 * 4096 * 2, 4)
    p(f"s_mul_i32 s4, s{sH}, 224"); srd(p, rW1, 58, 1024 * 3584 * 2, 4)
    p(f"s_lshl_b32 s4, s{sH}, 19"); srd(p, rK, 52, 32 * 2048 * 256, 4); srd(p, rV, 54, 32 * 2048 * 256, 4)
    p(f"""s_lshl_b32 s4, s{sT}, 1
    s_lshr_b32 s5, s{sW}, 1
    s_add_u32 s4, s4, s5
    s_and_b32 s5, s{sW}, 1
    s_lshl_b32 s5, s5, 12
    s_mul_i32 s6, s{sH}, 7
    s_add_u32 s6, s6, 1
    s_lshr_b32 s6, s6, 1
    s_mul_i32 s7, s4, 112
    s_add_u32 s7, s7, s6
    s_lshl_b32 s7, s7, 13
    s_add_u32 s7, s7, s5
    s_add_u32 s{sHo}, s7, {H_BASE:#x}
    s_and_b32 s6, s{sH}, 1
    s_cmp_eq_u32 s6, 0
    s_mov_b32 s6, {3*8192:#x}
    s_cselect_b32 s6, s6, {(-8192 + 8) & 0xffffffff:#x}
    s_add_u32 s{sHs}, s{sHo}, s6
    s_lshl_b32 s7, s4, 7
    s_lshl_b32 s6, s{sH}, 2
    s_add_u32 s7, s7, s6
    s_lshl_b32 s7, s7, 13
    s_add_u32 s7, s7, s5
    s_add_u32 s{sOo}, s7, {O_BASE:#x}""")

    def x_load(j, b):
        return VM(f"x{j}", f"buffer_load_dwordx4 {v(XF + (j % 4) * 16 + 4 * b, 4)}, v{vX}, s[{rXN}:{rXN+3}], s{sX} offen offset:{b*1024}")
    def w_m0(j, i):
        return f"s_add_u32 m0, s{sM1}, {(j % 4) * 16384 + (i >> 1) * 8192 + (i & 1) * 1024}"
    def w_dma(j, i):
        r, so = (rWq, sWq) if i < 2 else (rW1, sW1)
        return VM(f"w{j}", f"buffer_load_dwordx4 v{vWd[i]}, s[{r}:{r+3}], s{so} offen lds")
    def t_read(F, half):
        j, n = divmod(F, 15)
        part, u = divmod(n, 8)
        off = (j % 4) * 16384 + part * 8192 + half * 4096
        return DS(f"wf{F}", f"ds_read_b64_tr_b16 {v(WF + (F % 4) * 4 + 2 * half, 2)}, v{vT[u]} offset:{off}")
    def k_m0(u): return f"s_add_u32 m0, s{sMK}, {(u % 4) * 8192}"
    def v_m0(u): return f"s_add_u32 m0, s{sMV}, {(u % 4) * 8192}"
    def k_dma(u, i, so): return VM(f"k{u}", f"buffer_load_dwordx4 v{vKd[i]}, s[{rK}:{rK+3}], s{so} offen offset:{i*1024} lds")
    def v_dma(u, i, so): return VM(f"v{u}", f"buffer_load_dwordx4 v{vVd}, s[{rV}:{rV+3}], s{so} offen offset:{i*1024} lds")

    for j in range(3):
        for b in range(4): p(x_load(j, b))
        p(f"s_add_u32 s{sX}, s{sX}, 16384")
        for i in range(4 if j < 2 else 3):
            p(w_m0(j, i)); p("s_nop 0"); p(w_dma(j, i))
        if j < 2:
            p(f"s_add_u32 s{sWq}, s{sWq}, {32*8192}"); p(f"s_add_u32 s{sW1}, s{sW1}, {32*7168}")
    p(f"s_add_u32 s{sWq}, s{sWq}, {32*8192}")
    for i in range(240): p(f"v_accvgpr_write_b32 a{i}, 0")
    p(WV("w0", "x0")); p("s_barrier")
    for F in range(3): p(t_read(F, 0)); p(t_read(F, 1))
    p(WL("wf0"))

    kvpre = [("k", 0), ("k", 1), ("k", 2), ("v", 0), ("k", 3), ("v", 1)]
    def ph1_step(j, loop_tail=None):
        mf = []; g = [[] for _ in range(60)]
        for n in range(15):
            F = 15 * j + n
            for qb in range(4):
                acc = accQ(n, qb) if n < 8 else accH(n - 8, qb)
                mf.append(f"{M16} {a_(acc,4)}, {v(WF + (F % 4) * 4, 4)}, {v(XF + (j % 4) * 16 + 4 * qb, 4)}, {a_(acc,4)}")
            if F + 3 < 15 * 32:
                g[4*n].append(t_read(F + 3, 0)); g[4*n+1].append(t_read(F + 3, 1))
            if F + 1 < 15 * 32:
                g[4*n+3].append(WL(f"wf{F+1}"))
        if j + 2 < 32:
            g[1].insert(0, w_m0(j + 2, 3)); g[2].append(w_dma(j + 2, 3))
            g[4].insert(0, f"s_add_u32 s{sW1}, s{sW1}, {32*7168}")
        if j + 3 < 32:
            for b in range(4): g[6 + 4 * b].append(x_load(j + 3, b))
            g[20].insert(0, f"s_add_u32 s{sX}, s{sX}, 16384")
            for i in range(3):
                g[49 + 4 * i].insert(0, w_m0(j + 3, i)); g[50 + 4 * i].append(w_dma(j + 3, i))
            g[56].insert(0, f"s_add_u32 s{sWq}, s{sWq}, {32*8192}")
        else:
            for q in range(2):
                kind, u = kvpre[(j - 29) * 2 + q]
                g0 = 6 + 16 * q
                g[g0 - 2].insert(0, f"s_mov_b32 s{sVo}, {u * 8192}")
                g[g0 - 1].insert(0, k_m0(u) if kind == "k" else v_m0(u))
                for i in range(2):
                    g[g0 + 4 * i].append(k_dma(u, i, sVo) if kind == "k" else v_dma(u, i, sVo))
        if j + 1 < 32:
            g[46].append(WV(f"w{j+1}", f"x{j+1}"))
            g[47].append("s_barrier")
        if loop_tail: g[59].extend(loop_tail)
        p.block(mf, g)
    def ph1_body(it):
        for q in range(4):
            ph1_step(4 * it + q, [f"s_sub_u32 s{sCnt}, s{sCnt}, 1", f"s_cmp_lg_u32 s{sCnt}, 0", "s_cbranch_scc1 L_ph1"] if q == 3 else None)
    p.loop(7, ph1_body, "L_ph1", sCnt)
    for j in range(28, 32): ph1_step(j)

    p("s_nop 7")
    T = 16
    def hq_read(dst, acc):
        for e in range(4): p(f"v_accvgpr_read_b32 v{dst+e}, a{acc+e}")
    k = 0
    for pr in range(3):
        if pr: p(f"s_add_u32 s{sHo}, s{sHo}, 8192")
        for qb in range(4):
            b = T + (k % 2) * 16; k += 1
            hq_read(b, accH(2 * pr, qb)); hq_read(b + 4, accH(2 * pr + 1, qb))
            for e in range(8): p(f"v_max_f32 v{b+e}, 0, v{b+e}")
            for e in range(4): p(f"v_cvt_pk_bf16_f32 v{b+8+e}, v{b+2*e}, v{b+2*e+1}")
            p(VM("hst", f"buffer_store_dwordx4 {v(b+8,4)}, v{vSt}, s[{rWS}:{rWS+3}], s{sHo} offen offset:{qb*1024}"))
    for qb in range(4):
        b = T + (k % 2) * 16; k += 1
        hq_read(b, accH(6, qb))
        for e in range(4): p(f"v_max_f32 v{b+e}, 0, v{b+e}")
        for e in range(2): p(f"v_cvt_pk_bf16_f32 v{b+8+e}, v{b+2*e}, v{b+2*e+1}")
        p(VM("hst", f"buffer_store_dwordx2 {v(b+8,2)}, v{vSt}, s[{rWS}:{rWS+3}], s{sHs} offen offset:{qb*1024}"))
    p(f"s_mov_b32 s4, {QSCALE:#x}")
    for q in range(2):
        for d in range(8):
            b = 48 + (k % 2) * 16; k += 1
            hq_read(b, accQ(d, 2 * q)); hq_read(b + 4, accQ(d, 2 * q + 1))
            for e in range(8): p(f"v_mul_f32 v{b+e}, s4, v{b+e}")
            for e in range(4): p(f"v_cvt_pk_bf16_f32 v{b+8+e}, v{b+2*e}, v{b+2*e+1}")
            p("s_nop 0")
            p(f"v_permlane16_swap_b32 v{b+8}, v{b+10}")
            p(f"v_permlane16_swap_b32 v{b+9}, v{b+11}")
            for e in range(4): p(f"v_accvgpr_write_b32 a{QF(q,d)+e}, v{b+8+e}")
    for i in range(128): p(f"v_accvgpr_write_b32 a{i}, 0")

    def k_read(u, s): return DS(f"kf{u}", f"ds_read_b128 {a_(KF(s),4)}, v{vK[s]} offset:{(u % 4) * 8192}")
    def v_read(u, f, half):
        t, db = divmod(f, 4)
        return DS(f"vf{u}_{t}", f"ds_read_b64_tr_b16 {a_(VF(f) + 2 * half, 2)}, v{vV[db]} offset:{(u % 4) * 8192 + t * 4096 + half * 2048}")
    def qk_mf(u, first_c0=False):
        r = []
        for s in range(8):
            for q in range(2):
                d = v(S(u % 2, q), 16)
                c = ("0" if first_c0 else v(NM(q), 16)) if s == 0 else d
                r.append(f"{M32} {d}, {a_(KF(s),4)}, {a_(QF(q,s),4)}, {c}")
        return r
    def pv_mf(u):
        r = []
        for t in range(2):
            for db in range(4):
                for q in range(2):
                    r.append(f"{M32} {a_(O(db,q),16)}, {a_(VF(4*t+db),4)}, {v(P(u % 2, t, q), 4)}, {a_(O(db,q),16)}")
        return r
    def rowmax(par, q, dst, tmp):
        s = S(par, q)
        p(f"v_max3_f32 v{dst}, v{s}, v{s+1}, v{s+2}")
        for i in range(3, 15, 2): p(f"v_max3_f32 v{dst}, v{dst}, v{s+i}, v{s+i+1}")
        p(f"v_max_f32 v{dst}, v{dst}, v{s+15}")
        p(f"v_mov_b32 v{tmp}, v{dst}")
        p("s_nop 1")
        p(f"v_permlane32_swap_b32 v{dst}, v{tmp}")
        p(f"v_max_f32 v{dst}, v{dst}, v{tmp}")

    p(WV("k0", "k1")); p("s_barrier")
    for s in range(8): p(k_read(0, s))
    p(WL("kf0"))
    mf = qk_mf(0, True); g = [[] for _ in range(16)]
    for s in range(8): g[2 * s + 1].append(k_read(1, s))
    p.block(mf, g)
    p("s_nop 11")
    for q in range(2):
        rowmax(0, q, 16, 17)
        for i in range(16): p(f"v_sub_f32 v{S(0,q)+i}, v{S(0,q)+i}, v16")
        for i in range(16): p(f"v_sub_f32 v{NM(q)+i}, 0, v16")
        p(f"v_mov_b32 v{vL[q]}, 0")
    p(f"s_mov_b32 s{sKV}, {4*8192}")
    p(f"s_mov_b32 s{sVo}, {2*8192}")
    p(WL("kf1"))

    rare_sites = []
    def sm_items(u):
        par = u % 2
        it = []
        order = [(q, 8 * t + r) for t in range(2) for q in range(2) for r in range(8)]
        egap = list(range(0, 14)) + [14, 14, 15, 15] + list(range(16, 30))
        seen = [0, 0]; prev = [None, None]
        for e, (q, r) in enumerate(order):
            tmp = ET + e % 8
            it.append((egap[e], 1, f"v_exp_f32 v{tmp}, v{S(par,q)+r}"))
            ag = egap[e] + 1
            if seen[q] == 0: prev[q] = tmp
            elif seen[q] == 1: it.append((ag, 2, f"v_add_f32 v{vLu[q]}, v{prev[q]}, v{tmp}"))
            else: it.append((ag, 2, f"v_add_f32 v{vLu[q]}, v{vLu[q]}, v{tmp}"))
            seen[q] += 1
            if r % 2 == 1:
                it.append((ag, 3, f"v_cvt_pk_bf16_f32 v{P(par, r // 8, q) + (r % 8) // 2}, v{ET + (e-1) % 8}, v{tmp}"))
        return it
    def slot(u, loop_tail=None, site=None):
        do_qk = u + 1 < 64; do_pv = u >= 1
        mq = qk_mf(u + 1) if do_qk else [None] * 16
        mp = pv_mf(u - 1) if do_pv else [None] * 16
        mf = mq + mp
        sal = [[] for _ in range(32)]; mem = [[] for _ in range(32)]; val = [[] for _ in range(32)]
        if do_pv:
            for f in range(4, 8):
                for hf in range(2): mem[2 * (f - 4) + hf].append(v_read(u - 1, f, hf))
        if u + 4 < 64:
            sal[7].append(k_m0(u + 4))
            mem[8].append(k_dma(u + 4, 0, sKV)); mem[10].append(k_dma(u + 4, 1, sKV))
            sal[12].append(f"s_add_u32 s{sKV}, s{sKV}, 8192")
        if u + 2 < 64:
            sal[11].append(v_m0(u + 2))
            mem[12].append(v_dma(u + 2, 0, sVo)); mem[13].append(v_dma(u + 2, 1, sVo))
            sal[16].append(f"s_add_u32 s{sVo}, s{sVo}, 8192")
        tags = [f"v{u}"] + ([f"k{u+2}"] if u + 2 < 64 else [])
        sal[14].append(WV(*tags))
        if do_pv: sal[15].append(WL(f"vf{u-1}_1"))
        sal[15].append("s_barrier")
        if u + 2 < 64:
            for s in range(8): mem[16 + s].append(k_read(u + 2, s))
        for f in range(4):
            for hf in range(2): mem[24 + 2 * f + hf].append(v_read(u, f, hf))
        if u + 2 < 64: sal[31].append(WL(f"kf{u+2}"))
        for gp, pri, txt in sorted(sm_items(u), key=lambda x: (x[0], x[1])): val[gp].append(txt)
        val[31].append(f"v_max_f32 v{ET}, v{vLu[0]}, v{vLu[1]}")
        val[31].append(f"v_cmp_nge_f32 vcc, s{sThr}, v{ET}")
        lab = site if site else f"{u}"
        post = [f"s_cbranch_vccnz L_rare_{u % 2}", f"L_back_{lab}:"]
        if (lab, u % 2, bool(loop_tail)) not in rare_sites: rare_sites.append((lab, u % 2, bool(loop_tail)))
        sal[28].append(f"s_mov_b32 s{sSite}, {rare_sites.index((lab, u % 2, bool(loop_tail)))}")
        post += [f"v_add_f32 v{vL[0]}, v{vL[0]}, v{vLu[0]}", f"v_add_f32 v{vL[1]}, v{vL[1]}, v{vLu[1]}"]
        if loop_tail:
            sal[29].append(loop_tail[0]); sal[30].append(loop_tail[1]); post.append(loop_tail[2])
        for i in range(32):
            if mf[i]: p(mf[i])
            p(sal[i]); p(mem[i]); p(val[i])
        p(post)
    slot(0); slot(1)
    def att_body(it):
        for q in range(4):
            slot(2 + 4 * it + q, [f"s_sub_u32 s{sCnt}, s{sCnt}, 1", f"s_cmp_lg_u32 s{sCnt}, 0", "s_cbranch_scc1 L_att"] if q == 3 else None, site=f"l{q}")
    p.loop(14, att_body, "L_att", sCnt)
    for u in range(58, 64): slot(u)
    for f in range(4, 8):
        for hf in range(2): p(v_read(63, f, hf))
    mp = pv_mf(63)
    p(WL("vf63_0"))
    for i in range(16):
        if i == 8: p(WL("vf63_1"))
        p(mp[i])
    for q in range(2):
        p(f"v_mov_b32 v16, v{vL[q]}")
        p("s_nop 1")
        p(f"v_permlane32_swap_b32 v{vL[q]}, v16")
        p(f"v_add_f32 v{vL[q]}, v{vL[q]}, v16")
        p(f"v_rcp_f32 v{vL[q]}, v{vL[q]}")
    p(f"""v_bfe_u32 v16, v{vLane}, 4, 1
    v_bfe_u32 v17, v{vLane}, 5, 1
    v_and_b32 v18, 15, v{vLane}
    v_lshlrev_b32 v18, 4, v18
    v_lshl_add_u32 v18, v16, 9, v18
    v_lshl_add_u32 v{vSt}, v17, 8, v18
    s_nop 4""")
    k = 0
    for db in range(4):
        if db: p(f"s_add_u32 s{sOo}, s{sOo}, 8192")
        for q in range(2):
            b = 16 + (k % 2) * 32; k += 1
            for r in range(16): p(f"v_accvgpr_read_b32 v{b+r}, a{O(db,q)+r}")
            for r in range(16): p(f"v_mul_f32 v{b+r}, v{b+r}, v{vL[q]}")
            dst = {0: 0, 1: 1, 4: 2, 5: 3, 2: 4, 3: 5, 6: 6, 7: 7}
            for c in range(8): p(f"v_cvt_pk_bf16_f32 v{b+16+dst[c]}, v{b+2*c}, v{b+2*c+1}")
            p("s_nop 0")
            for c in range(4): p(f"v_permlane16_swap_b32 v{b+16+c}, v{b+20+c}")
            p(VM("ost", f"buffer_store_dwordx4 {v(b+16,4)}, v{vSt}, s[{rWS}:{rWS+3}], s{sOo} offen offset:{2*q*1024}"))
            p(VM("ost", f"buffer_store_dwordx4 {v(b+20,4)}, v{vSt}, s[{rWS}:{rWS+3}], s{sOo} offen offset:{(2*q+1)*1024}"))
    p("L_a_end:")
    p("s_endpgm")
    main_trace = p.trace
    errs = check(main_trace, "attn")
    for par in range(2):
        has_next = True
        p.trace = []
        p.label(f"L_rare_{par}")
        p("s_nop 15")
        for q in range(2):
            rowmax(par, q, 16, 17)
            p("v_max_f32 v16, 0, v16")
            p("v_sub_f32 v17, 0, v16")
            p("v_exp_f32 v17, v17")
            for i in range(16):
                p(f"v_sub_f32 v{S(par,q)+i}, v{S(par,q)+i}, v16")
                if has_next: p(f"v_sub_f32 v{S(1-par,q)+i}, v{S(1-par,q)+i}, v16")
                p(f"v_sub_f32 v{NM(q)+i}, v{NM(q)+i}, v16")
            p(f"v_mul_f32 v{vL[q]}, v{vL[q]}, v17")
            for db in range(4):
                for r in range(0, 16, 4):
                    for e in range(4): p(f"v_accvgpr_read_b32 v{20+e}, a{O(db,q)+r+e}")
                    for e in range(4): p(f"v_mul_f32 v{20+e}, v{20+e}, v17")
                    for e in range(4): p(f"v_accvgpr_write_b32 a{O(db,q)+r+e}, v{20+e}")
            for i in range(16): p(f"v_exp_f32 v{24+i}, v{S(par,q)+i}")
            p("s_nop 0")
            p(f"v_add_f32 v{vLu[q]}, v24, v25")
            for i in range(2, 16): p(f"v_add_f32 v{vLu[q]}, v{vLu[q]}, v{24+i}")
            for i in range(8): p(f"v_cvt_pk_bf16_f32 v{P(par, i // 4, q) + i % 4}, v{24+2*i}, v{25+2*i}")
        mine = [(i, x) for i, x in enumerate(rare_sites) if x[1] == par]
        for i, (lab, _, lt) in mine:
            if lt: continue
            p(f"s_cmp_eq_u32 s{sSite}, {i}"); p(f"s_cbranch_scc1 L_back_{lab}")
        lts = [x for _, x in mine if x[2]]
        if lts:
            p(f"s_cmp_lg_u32 s{sCnt}, 0"); p(f"s_branch L_back_{lts[0][0]}")
        else:
            p("s_endpgm")
        errs += check(p.trace, f"rare{par}")
    p.trace = []
    return p, desc("attn_kernel", 512, 64, 256), errs

def gen_out(opt):
    p = Prog(); begin(p, "out_kernel")
    vLane = 1; vA = [2, 3]; vT = [list(range(4, 8)), list(range(8, 12))]; vWd = [12, 13]; vAd = 14; vXo = 15
    def AF(buf, nb): return 16 + buf * 16 + nb * 4
    def BF(buf, rb): return 48 + buf * 16 + rb * 4
    XR = 80
    def acc(nb, rb): return (nb * 4 + rb) * 4
    sW = 3; rAct = 8; rW = 12; rX = 16; rOut = 20
    sA = 24; sWo = 25; sCnt = 26; sM = 27; sTy = 28; sPair = 29; sG = 30; sRT = 31; sCT = 32
    p.c("128x128 tiles: workgroups of XCD-group 0 compute g = silu(H @ W2), group 1 compute s = O @ Wo and finish out = x + s*g")
    p("""s_cmp_ge_u32 s2, 256
    s_cbranch_scc1 L_c_end
    s_load_dwordx2 s[36:37], s[0:1], 0
    s_load_dwordx2 s[38:39], s[0:1], 32
    s_load_dwordx2 s[40:41], s[0:1], 56
    s_load_dwordx2 s[42:43], s[0:1], 64
    s_load_dwordx2 s[44:45], s[0:1], 80
    v_lshrrev_b32 v15, 6, v0
    v_and_b32 v1, 63, v0
    s_bfe_u32 s28, s2, 0x10002
    s_lshr_b32 s5, s2, 3
    v_readfirstlane_b32 s3, v15
    s_bfe_u32 s4, s2, 0x10001
    s_lshl_b32 s4, s4, 3
    s_and_b32 s6, s5, 7
    s_add_u32 s31, s4, s6
    s_and_b32 s4, s2, 1
    s_lshl_b32 s4, s4, 2
    s_lshr_b32 s6, s5, 3
    s_add_u32 s32, s4, s6
    s_lshl_b32 s29, s31, 3
    s_add_u32 s29, s29, s32""")
    p(f"""s_lshr_b32 s4, s{sW}, 1
    s_lshl_b32 s4, s4, 13
    s_add_u32 s4, s4, 2048
    v_lshlrev_b32 v{vAd}, 4, v{vLane}
    v_add_u32 v{vA[0]}, s4, v{vAd}
    v_add_u32 v{vA[1]}, 0x10000, v{vA[0]}""")
    p(f"""v_lshrrev_b32 v16, 5, v{vLane}
    v_bfe_u32 v17, v{vLane}, 2, 3
    v_and_b32 v18, 3, v{vLane}
    v_lshlrev_b32 v19, 12, v16
    v_lshl_add_u32 v19, v17, 8, v19
    v_lshl_add_u32 v19, v17, 5, v19
    v_lshl_add_u32 v19, v18, 3, v19
    s_and_b32 s4, s{sW}, 1
    s_lshl_b32 s4, s4, 7
    v_xor_b32 v19, s4, v19""")
    for i in range(4):
        p(f"v_xor_b32 v{vT[0][i]}, {i*32}, v19")
        p(f"v_add_u32 v{vT[1][i]}, 0x10000, v{vT[0][i]}")
    p(f"""v_lshrrev_b32 v16, 4, v{vLane}
    v_bfe_u32 v17, v{vLane}, 1, 3
    v_and_b32 v18, 1, v{vLane}
    s_lshl_b32 s4, s{sW}, 3""")
    for i in range(2):
        p(f"""v_add_u32 v19, {4*i}, v16
        v_xor_b32 v20, v17, v19
        v_add_u32 v19, s4, v19
        v_lshlrev_b32 v19, 11, v19
        v_lshl_add_u32 v19, v20, 5, v19
        v_lshl_add_u32 v19, v18, 4, v19
        v_subrev_u32 v{vWd[i]}, {i*1024}, v19""")
    p(f"""s_lshl_b32 s4, s{sW}, 11
    v_add_u32 v{vAd}, s4, v{vAd}
    s_lshl_b32 s{sM}, s{sW}, 12""")
    p(f"""v_and_b32 v16, 15, v{vLane}
    v_lshrrev_b32 v17, 4, v{vLane}
    v_lshlrev_b32 v16, 11, v16
    v_lshl_add_u32 v16, v17, 3, v16
    s_lshl_b32 s4, s{sRT}, 18
    s_lshr_b32 s5, s{sW}, 1
    s_lshl_b32 s5, s5, 17
    s_add_u32 s4, s4, s5
    s_lshl_b32 s5, s{sCT}, 8
    s_add_u32 s4, s4, s5
    s_and_b32 s5, s{sW}, 1
    s_lshl_b32 s5, s5, 7
    s_add_u32 s4, s4, s5
    v_add_u32 v{vXo}, s4, v16
    s_waitcnt lgkmcnt(0)""")
    srd(p, rAct, 44, WS_BYTES); srd(p, rX, 36, 2048 * 2048); srd(p, rOut, 42, 2048 * 2048)
    p(f"""s_cmp_eq_u32 s{sTy}, 0
    s_cselect_b32 s46, s40, s38
    s_cselect_b32 s47, s41, s39
    s_mov_b32 s48, {3584*2048:#x}
    s_mov_b32 s49, 112
    s_mov_b32 s50, {H_BASE - 2048:#x}
    s_cselect_b32 s48, s48, {4096*2048:#x}
    s_cselect_b32 s49, s49, 128
    s_cselect_b32 s50, s50, {O_BASE - 2048:#x}
    s_cselect_b32 s{sCnt}, 13, 15
    s_mul_i32 s4, s{sRT}, s49
    s_lshl_b32 s4, s4, 13
    s_add_u32 s{sA}, s4, s50
    s_lshl_b32 s{sWo}, s{sCT}, 8
    s_mov_b32 s{rW}, s46
    s_and_b32 s{rW+1}, s47, 0xffff
    s_mov_b32 s{rW+2}, s48
    s_mov_b32 s{rW+3}, 0x20000
    s_lshl_b32 s4, s{sPair}, 15
    s_lshl_b32 s5, s{sW}, 13
    s_add_u32 s4, s4, s5
    s_add_u32 s{sG}, s4, {G_BASE:#x}""")
    def m0(j): return f"s_add_u32 m0, s{sM}, {(j % 8) * 16384}"
    def dma(j, i):
        if i < 2: return VM(f"d{j}", f"buffer_load_dwordx4 v{vWd[i]}, s[{rW}:{rW+3}], s{sWo} offen offset:{i*1024} lds")
        return VM(f"d{j}", f"buffer_load_dwordx4 v{vAd}, s[{rAct}:{rAct+3}], s{sA} offen offset:{i*1024} lds")
    adv = [f"s_add_u32 s{sWo}, s{sWo}, {32*2048}", f"s_add_u32 s{sA}, s{sA}, 8192"]
    def b_read(j, i):
        hi, o = divmod((j % 8) * 16384, 65536)
        return DS(f"b{j}", f"ds_read_b128 {v(BF(j % 2, i), 4)}, v{vA[hi]} offset:{o + (i // 2) * 4096 + (i % 2) * 1024}")
    def a_read(j, i, half):
        hi, o = divmod((j % 8) * 16384, 65536)
        return DS(f"a{j}_{i}", f"ds_read_b64_tr_b16 {v(AF(j % 2, i) + 2 * half, 2)}, v{vT[hi][i]} offset:{o + half * 8192}")
    AHEAD = 6
    for j in range(AHEAD):
        p(m0(j)); p("s_nop 0")
        for i in range(4): p(dma(j, i))
        p(adv)
    for i in range(64): p(f"v_accvgpr_write_b32 a{i}, 0")
    p(WV("d0", "d1")); p("s_barrier")
    for i in range(4): p(b_read(0, i))
    for i in range(4): p(a_read(0, i, 0)); p(a_read(0, i, 1))
    p(WL("a0_3"))
    NS = 128
    def step(j, loop_tail=None):
        mf = [f"{M16} {a_(acc(nb, rb), 4)}, {v(AF(j % 2, nb), 4)}, {v(BF(j % 2, rb), 4)}, {a_(acc(nb, rb), 4)}" for nb in range(4) for rb in range(4)]
        g = [[] for _ in range(16)]
        if j + 1 < NS:
            for i in range(4): g[i].append(b_read(j + 1, i))
            for i in range(4):
                g[4 + 2 * i].append(a_read(j + 1, i, 0)); g[5 + 2 * i].append(a_read(j + 1, i, 1))
        if j + AHEAD < NS:
            g[11].insert(0, m0(j + AHEAD))
            for i in range(4): g[12 + i].append(dma(j + AHEAD, i))
        elif j + AHEAD - NS < 4:
            rb = j + AHEAD - NS
            g[11].insert(0, f"s_mov_b32 s4, {rb * 16 * 2048}")
            for nb in range(4):
                g[12 + nb].append(VM("x", f"buffer_load_dwordx2 {v(XR + (nb * 4 + rb) * 2, 2)}, v{vXo}, s[{rX}:{rX+3}], s4 offen offset:{nb*32}"))
        post = []
        if j + AHEAD < NS: post += adv
        if j + 1 < NS:
            post.append(WL(f"a{j+1}_3"))
            if j % 2 == 0 and j + 2 < NS:
                post.append(WV(f"d{j+2}", f"d{j+3}") if j + 3 < NS else WV(f"d{j+2}"))
                post.append("s_barrier")
        if loop_tail:
            g[8].insert(0, loop_tail[0]); post = post + [loop_tail[1], loop_tail[2]]
        g[15].extend(post)
        p.block(mf, g)
    def body(it):
        for q in range(8):
            step(8 * it + q, [f"s_sub_u32 s{sCnt}, s{sCnt}, 1", f"s_cmp_lg_u32 s{sCnt}, 0", "s_cbranch_scc1 L_c_loop"] if q == 7 else None)
    p.loop(15, body, "L_c_loop", 51)
    for j in range(120, 128): step(j)
    p("s_nop 7")
    p(f"s_cmp_lg_u32 s{sTy}, 0")
    p("s_cbranch_scc1 L_c_s")
    p(f"s_mov_b32 s4, {f32(-1.4426950408889634):#x}")
    p(f"v_lshlrev_b32 v2, 4, v{vLane}")
    k = 0
    for rb in range(4):
        for np_ in range(2):
            b = 16 + (k % 2) * 24
            for e in range(8): p(f"v_accvgpr_read_b32 v{b+e}, a{acc(2*np_ + e // 4, rb) + e % 4}")
            for e in range(4): p(f"v_cvt_pk_bf16_f32 v{b+8+e}, v{b+2*e}, v{b+2*e+1}")
            for e in range(4):
                p(f"v_lshlrev_b32 v{b+2*e}, 16, v{b+8+e}")
                p(f"v_and_b32 v{b+2*e+1}, 0xffff0000, v{b+8+e}")
            for e in range(8): p(f"v_mul_f32 v{b+8+e}, s4, v{b+e}")
            for e in range(8): p(f"v_exp_f32 v{b+8+e}, v{b+8+e}")
            for e in range(8): p(f"v_add_f32 v{b+8+e}, 1.0, v{b+8+e}")
            for e in range(8): p(f"v_rcp_f32 v{b+8+e}, v{b+8+e}")
            for e in range(8): p(f"v_mul_f32 v{b+e}, v{b+e}, v{b+8+e}")
            for e in range(4): p(f"v_cvt_pk_bf16_f32 v{b+16+e}, v{b+2*e}, v{b+2*e+1}")
            if k == 4: p(f"s_add_u32 s{sG}, s{sG}, 4096")
            p(VM("g", f"buffer_store_dwordx4 {v(b+16,4)}, v2, s[{rAct}:{rAct+3}], s{sG} offen offset:{(k % 4)*1024} sc1"))
            k += 1
    p("s_waitcnt vmcnt(0)")
    p("s_barrier")
    p(f"""s_cmp_lg_u32 s{sW}, 0
    s_cbranch_scc1 L_c_end
    s_lshl_b32 s4, s{sPair}, 7
    s_add_u32 s4, s4, {FLAG_BASE:#x}
    v_mov_b32 v2, 0
    v_mov_b32 v3, 1
    s_mov_b64 exec, 1
    buffer_store_dword v3, v2, s[{rAct}:{rAct+3}], s4 offen sc1
    s_endpgm""")
    p("L_c_s:")
    p(f"""s_cmp_lg_u32 s{sW}, 0
    s_cbranch_scc1 L_c_wait
    s_lshl_b32 s4, s{sPair}, 7
    s_add_u32 s4, s4, {FLAG_BASE:#x}
    v_mov_b32 v2, 0
    s_mov_b32 s6, 0x400000
    L_c_poll:
    buffer_load_dword v3, v2, s[{rAct}:{rAct+3}], s4 offen sc1
    s_waitcnt vmcnt(0)
    v_readfirstlane_b32 s5, v3
    s_nop 1
    s_cmp_eq_u32 s5, 1
    s_cbranch_scc1 L_c_wait
    s_sub_u32 s6, s6, 1
    s_cmp_lg_u32 s6, 0
    s_cbranch_scc1 L_c_poll
    L_c_wait:
    s_barrier""")
    p(f"v_lshlrev_b32 v2, 4, v{vLane}")
    GR = 16
    for k in range(8):
        if k == 4: p(f"s_add_u32 s{sG}, s{sG}, 4096")
        p(VM(f"g{k}", f"buffer_load_dwordx4 {v(GR + 4 * k, 4)}, v2, s[{rAct}:{rAct+3}], s{sG} offen offset:{(k % 4)*1024} sc1"))
    k = 0
    for rb in range(4):
        p(f"s_mov_b32 s4, {rb * 16 * 2048}")
        for np_ in range(2):
            b = 48 + (k % 2) * 16
            for e in range(8): p(f"v_accvgpr_read_b32 v{b+e}, a{acc(2*np_ + e // 4, rb) + e % 4}")
            for e in range(4): p(f"v_cvt_pk_bf16_f32 v{b+8+e}, v{b+2*e}, v{b+2*e+1}")
            p(WV(f"g{k}"))
            for e in range(4):
                gr = GR + 4 * k + e
                xr = XR + ((2 * np_ + e // 2) * 4 + rb) * 2 + e % 2
                p(f"v_lshlrev_b32 v{b+2*e}, 16, v{b+8+e}")
                p(f"v_and_b32 v{b+2*e+1}, 0xffff0000, v{b+8+e}")
                p(f"v_lshlrev_b32 v{b+12}, 16, v{gr}")
                p(f"v_and_b32 v{b+13}, 0xffff0000, v{gr}")
                p(f"v_mul_f32 v{b+2*e}, v{b+2*e}, v{b+12}")
                p(f"v_mul_f32 v{b+2*e+1}, v{b+2*e+1}, v{b+13}")
                p(f"v_cvt_pk_bf16_f32 v{b+8+e}, v{b+2*e}, v{b+2*e+1}")
                p(f"v_lshlrev_b32 v{b+2*e}, 16, v{b+8+e}")
                p(f"v_and_b32 v{b+2*e+1}, 0xffff0000, v{b+8+e}")
                p(f"v_lshlrev_b32 v{b+12}, 16, v{xr}")
                p(f"v_and_b32 v{b+13}, 0xffff0000, v{xr}")
                p(f"v_add_f32 v{b+2*e}, v{b+2*e}, v{b+12}")
                p(f"v_add_f32 v{b+2*e+1}, v{b+2*e+1}, v{b+13}")
                p(f"v_cvt_pk_bf16_f32 v{b+8+e}, v{b+2*e}, v{b+2*e+1}")
            for hh in range(2):
                p(VM("o", f"buffer_store_dwordx2 {v(b+8+2*hh,2)}, v{vXo}, s[{rOut}:{rOut+3}], s4 offen offset:{(2*np_+hh)*32}"))
            k += 1
    p("L_c_end:")
    p("s_endpgm")
    return p, desc("out_kernel", 192, 64, 128)

def main(fn, opt=()):
    pl, dl = gen_ln()
    pa, da, ea = gen_attn(opt)
    pc, dc = gen_out(opt)
    errs = check(pl.trace, "ln") + ea + check(pc.trace, "out")
    for e in errs[:40]: print("HAZARD", e)
    hdr = open("cdna_kernels/" + KN + ".s.ref").read().split("; Override")[0]
    hdr += "; @launch kernel=ln_kernel grid=(256,1,1) block=(512,1,1) lds=0\n"
    hdr += "; @launch kernel=attn_kernel grid=(256,1,1) block=(256,1,1) lds=131072\n"
    hdr += "; @launch kernel=out_kernel grid=(256,1,1) block=(256,1,1) lds=131072\n"
    hdr += '.amdgcn_target "amdgcn-amd-amdhsa--gfx950"\n.text\n'
    s = hdr + pl.text() + pa.text() + pc.text() + '.section .rodata,"a"\n' + "".join(".p2align 6\n" + d for d in (dl, da, dc))
    open(fn, "w").write(s)
    print(f"wrote {fn}: {len(s)} bytes, hazards: {len(errs)}")

if __name__ == "__main__":
    main(sys.argv[1] if len(sys.argv) > 1 else "k.s", sys.argv[2:])
```

```python
import re

class VM:
    def __init__(s, tag, text): s.tag = tag; s.text = text
class DS:
    def __init__(s, tag, text): s.tag = tag; s.text = text
class WV:
    def __init__(s, *tags): s.tags = tags
class WL:
    def __init__(s, *tags): s.tags = tags

class Prog:
    def __init__(s):
        s.out = []
        s.trace = []
        s.vm = []; s.ds = []
        s.cap = None
        s.nlab = 0
    def _put(s, line, instr=True):
        if s.cap is not None: s.cap.append(line)
        else: s.out.append(line)
        if instr: s.trace.append(line.strip())
    def raw(s, line): s._put(line, False)
    def label(s, n): s._put(n + ":", False)
    def c(s, t): s._put("    ; " + t, False)
    def newlabel(s, p="L"):
        s.nlab += 1; return f"{p}_{s.nlab}"
    def _cnt(s, lst, tags, mx, what):
        idx = -1
        for t in tags:
            k = [i for i, x in enumerate(lst) if x == t]
            assert k, f"{what} wait on unknown tag {t}"
            idx = max(idx, k[-1])
        n = len(lst) - 1 - idx
        return min(n, mx)
    def __call__(s, it):
        if isinstance(it, (list, tuple)):
            for x in it: s(x)
        elif isinstance(it, VM):
            s.vm.append(it.tag); s._put("    " + it.text)
        elif isinstance(it, DS):
            s.ds.append(it.tag); s._put("    " + it.text)
        elif isinstance(it, WV):
            n = s._cnt(s.vm, it.tags, 63, "vm"); s._put(f"    s_waitcnt vmcnt({n})")
        elif isinstance(it, WL):
            n = s._cnt(s.ds, it.tags, 15, "ds"); s._put(f"    s_waitcnt lgkmcnt({n})")
        else:
            for l in it.strip("\n").split("\n"):
                l = l.strip()
                if not l: continue
                if l.endswith(":"): s._put(l, False)
                elif l.startswith(";") or l.startswith("."): s._put("    " + l if l.startswith(";") else l, False)
                else: s._put("    " + l)
    def block(s, mf, gaps):
        for i, m in enumerate(mf):
            s(m)
            s(gaps[i])
    def loop(s, n, body, label, counter, pre_align=True, init=None):
        assert s.cap is None
        tail = [f"s_sub_u32 s{counter}, s{counter}, 1", f"s_cmp_lg_u32 s{counter}, 0", f"s_cbranch_scc1 {label}"]
        first = None
        s(f"s_mov_b32 s{counter}, {n if init is None else init}")
        for it in range(n):
            s.cap = []
            body(it)
            txt = s.cap; s.cap = None
            if first is None: first = txt
            else:
                if txt != first:
                    assert len(txt) == len(first), f"loop {label} iteration {it} differs in length"
                    for i, (x, y) in enumerate(zip(first, txt)):
                        if x != y:
                            mx = re.fullmatch(r"\s*s_waitcnt (\w+)\((\d+)\)", x); my = re.fullmatch(r"\s*s_waitcnt (\w+)\((\d+)\)", y)
                            if mx and my and mx.group(1) == my.group(1):
                                if int(my.group(2)) < int(mx.group(2)): first[i] = y
                            else: raise AssertionError(f"loop {label} iteration {it} differs: {x!r} vs {y!r}")
        if pre_align: s.out.append(".p2align 6")
        s.out.append(label + ":")
        s.out.extend(first)
    def text(s): return "\n".join(s.out) + "\n"

_reg = re.compile(r"\b([vas])(\d+)\b|\b([vas])\[(\d+):(\d+)\]")
def regs(op):
    r = set()
    for m in _reg.finditer(op):
        if m.group(1): r.add((m.group(1), int(m.group(2))))
        else:
            for i in range(int(m.group(4)), int(m.group(5)) + 1): r.add((m.group(3), i))
    if re.search(r"\bvcc\b", op): r.add(("s", "vcc"))
    if re.search(r"\bm0\b", op): r.add(("s", "m0"))
    return r
TRANS = ("v_exp_f32", "v_log_f32", "v_rcp_f32", "v_rsq_f32", "v_sqrt_f32")
def decode(line):
    line = line.split(";")[0].strip()
    p = line.split(None, 1)
    op = p[0]; ops = [x.strip() for x in p[1].split(",")] if len(p) > 1 else []
    d = dict(op=op, w=set(), r=set(), kind="salu", line=line, srcc=set(), ab=set(), data=set(), passes=0, states=1)
    if op == "s_nop": d["states"] = int(ops[0], 0) + 1
    if op.startswith("v_mfma"):
        d["kind"] = "mfma"; d["w"] = regs(ops[0]); d["ab"] = regs(ops[1]) | regs(ops[2]); d["srcc"] = regs(ops[3])
        d["r"] = d["ab"] | d["srcc"]; d["passes"] = 8 if "32x32x16" in op else 4
    elif op.startswith("v_"):
        d["kind"] = "valu"
        if op.startswith("v_cmp"):
            d["w"] = regs(ops[0]); d["r"] = set().union(*[regs(x) for x in ops[1:]])
        elif "swap" in op:
            d["w"] = regs(ops[0]) | regs(ops[1]); d["r"] = set(d["w"])
        else:
            d["w"] = regs(ops[0]); d["r"] = set().union(*[regs(x) for x in ops[1:]]) if len(ops) > 1 else set()
            if op.startswith(("v_fmac", "v_mac")): d["r"] |= d["w"]
            if "_dpp" in op: d["r"] |= d["w"]
            if op.startswith("v_cndmask") and len(ops) == 3: d["r"].add(("s", "vcc"))
    elif op.startswith("ds_"):
        d["kind"] = "ds"
        if "read" in op: d["w"] = regs(ops[0]); d["r"] = regs(ops[1].split()[0])
        else: d["r"] = set().union(*[regs(x.split()[0]) for x in ops])
    elif op.startswith(("buffer_", "global_")):
        d["kind"] = "vmem"
        lds = " lds" in line
        if "load" in op and not lds:
            d["w"] = regs(ops[0]); d["r"] = set().union(*[regs(x) for x in ops[1:]])
        else:
            d["r"] = set().union(*[regs(x) for x in ops])
            if "store" in op: d["data"] = regs(ops[0]) if op.startswith("buffer_") else regs(ops[1])
            if lds: d["r"].add(("s", "m0")); d["lds"] = True
    elif op.startswith("s_"):
        if op.startswith(("s_cmp", "s_cbranch", "s_branch", "s_waitcnt", "s_barrier", "s_nop", "s_endpgm", "s_setprio", "s_sleep")):
            d["r"] = set().union(*[regs(x) for x in ops]) if ops else set()
        else:
            d["w"] = regs(ops[0]) if ops else set(); d["r"] = set().union(*[regs(x) for x in ops[1:]]) if len(ops) > 1 else set()
    return d

def check(trace, name=""):
    ins = [decode(l) for l in trace]
    errs = []
    n = len(ins)
    for i, p in enumerate(ins):
        dist = 0
        for j in range(i + 1, min(n, i + 24)):
            c = ins[j]
            need = 0
            vw = {x for x in p["w"] if x[0] in "va"}
            sw = {x for x in p["w"] if x[0] == "s"}
            if p["kind"] == "valu":
                if c["kind"] == "mfma" and vw & c["r"]: need = max(need, 2)
                if c["kind"] == "valu" and p["op"].startswith(TRANS) and not c["op"].startswith(TRANS) and vw & c["r"]: need = max(need, 1)
                if c["kind"] == "valu" and ("permlane" in c["op"] or "_dpp" in c["op"]) and vw & c["r"]: need = max(need, 2)
                if c["op"].startswith(("v_readlane", "v_readfirstlane")) and vw & c["r"]: need = max(need, 1)
                if c["kind"] == "vmem" and sw & c["r"]: need = max(need, 5)
                if c["kind"] == "valu" and sw & c["r"]: need = max(need, 2)
                if c["kind"] == "salu" and sw & c["r"] and not c["op"].startswith("s_cbranch"): need = max(need, 1)
            if p["kind"] == "mfma":
                big = {4: 8, 8: 12}[p["passes"]]
                if c["kind"] == "mfma":
                    if vw & c["ab"]: need = max(need, big)
                    if vw & c["srcc"] and not (c["srcc"] == p["w"] and c["passes"] == p["passes"]): need = max(need, big - 2)
                    if vw & c["w"] and not (c["srcc"] == p["w"]) : need = max(need, big - 2)
                elif c["kind"] in ("valu", "ds", "vmem"):
                    if vw & (c["r"] | c["w"]): need = max(need, big)
                    if c["kind"] == "valu" and p["srcc"] & c["w"]: need = max(need, {4: 3, 8: 7}[p["passes"]])
            if p["kind"] == "salu" and ("s", "m0") in p["w"] and c.get("lds"): need = max(need, 1)
            if p["kind"] == "vmem" and p["data"] and len(p["data"]) >= 3 and c["w"] & p["data"]:
                need = max(need, 2 if c["kind"] == "valu" else 1)
            if need > dist:
                errs.append(f"{name}: need {need} have {dist}: [{i}] {p['line']}  ->  [{j}] {c['line']}")
            dist += c["states"]
            if dist >= 20: break
    return errs
```

```python
import sys, struct
from fw import *

KN = "recurrent_scan__mha_block_cached__dense_activation_relu__prompt"
XN_BASE = 0x0
H_BASE = 0x400000
O_BASE = 0x1200000
G_BASE = 0x2200000
FLAG_BASE = 0x2600000
WS_BYTES = 0x10000000
def f32(x): return struct.unpack("<I", struct.pack("<f", x))[0]
QSCALE = f32(128 ** -0.5 * 1.4426950408889634)
LOG2E = f32(1.4426950408889634)

def v(b, n=1): return f"v{b}" if n == 1 else f"v[{b}:{b+n-1}]"
def a_(b, n=1): return f"a{b}" if n == 1 else f"a[{b}:{b+n-1}]"

def begin(p, name):
    p.raw(f".globl {name}"); p.raw(".p2align 8"); p.raw(f".type {name},@function"); p.raw(f"{name}:")
def desc(name, vgpr, sgpr, accum):
    return f""".amdhsa_kernel {name}
  .amdhsa_next_free_vgpr {vgpr}
  .amdhsa_next_free_sgpr {sgpr}
  .amdhsa_accum_offset {accum}
  .amdhsa_group_segment_fixed_size 0
  .amdhsa_kernarg_size 88
  .amdhsa_user_sgpr_count 2
  .amdhsa_user_sgpr_kernarg_segment_ptr 1
  .amdhsa_system_sgpr_workgroup_id_x 1
  .amdhsa_float_denorm_mode_32 3
.end_amdhsa_kernel
"""
def srd(p, d, b, nbytes, off_sgpr=None):
    if off_sgpr is None:
        p(f"s_mov_b32 s{d}, s{b}")
        p(f"s_and_b32 s{d+1}, s{b+1}, 0xffff")
        p(f"s_mov_b32 s{d+2}, {nbytes:#x}")
    else:
        p(f"s_add_u32 s{d}, s{b}, s{off_sgpr}")
        p(f"s_addc_u32 s{d+1}, s{b+1}, 0")
        p(f"s_and_b32 s{d+1}, s{d+1}, 0xffff")
        p(f"s_sub_u32 s{d+2}, {nbytes:#x}, s{off_sgpr}")
    p(f"s_mov_b32 s{d+3}, 0x20000")

PROF_BASE = 0x2700000
PROF = False
def stamp(p, i):
    if PROF:
        p(f"s_memrealtime s[{70+2*i}:{71+2*i}]"); p(f"s_memtime s[94:95]"); p("s_waitcnt lgkmcnt(0)"); p(f"s_mov_b32 s{71+2*i}, s94")
def tr_a(): return ["s_memrealtime s[96:97]", "s_memtime s[98:99]"] if PROF else []
def tr_b(va, cnt, add, vl, vt):
    return [f"s_add_u32 s93, s{cnt}, {add}", f"v_cmp_eq_u32 vcc, s93, v{vl}", f"v_mov_b32 v{vt}, s96", "s_nop 0", f"v_cndmask_b32 v{va}, v{va}, v{vt}, vcc",
            f"v_mov_b32 v{vt}, s98", f"v_cndmask_b32 v{va+1}, v{va+1}, v{vt}, vcc"] if PROF else []
def tr_out(p, kidx, srd, va, vt):
    if PROF:
        p(f"s_lshl_b32 s92, s2, 11"); p(f"s_add_u32 s92, s92, {PROF_BASE + 0x100000 + kidx * 0x80000:#x}")
        p(f"v_lshlrev_b32 v{vt}, 3, v0")
        p(f"buffer_store_dwordx2 v[{va}:{va+1}], v{vt}, s[{srd}:{srd+3}], s92 offen")
def stamp_out(p, kidx, n, srd, vt):
    if PROF:
        p("s_waitcnt vmcnt(0)"); stamp(p, n - 1)
        p(f"v_cmp_eq_u32 vcc, 0, v0"); p("s_nop 1"); p("s_and_saveexec_b64 s[68:69], vcc")
        lab = p.newlabel(f"L_prof{kidx}"); p(f"s_cbranch_execz {lab}")
        p(f"s_lshl_b32 s92, s2, 6"); p(f"s_add_u32 s92, s92, {PROF_BASE + kidx * 0x8000:#x}")
        p(f"v_mov_b32 v{vt+1}, 0")
        for i in range(n):
            p(f"v_mov_b32 v{vt}, s{70+2*i}")
            p(f"buffer_store_dword v{vt}, v{vt+1}, s[{srd}:{srd+3}], s92 offen offset:{4*i}")
            p(f"v_mov_b32 v{vt+2}, s{71+2*i}")
            p(f"buffer_store_dword v{vt+2}, v{vt+1}, s[{srd}:{srd+3}], s92 offen offset:{32+4*i}")
        p(f"{lab}:"); p("s_mov_b64 exec, s[68:69]")

def wave_sum(p, r):
    for sh in (1, 2, 4, 8):
        p("s_nop 1"); p(f"v_add_f32_dpp v{r}, v{r}, v{r} row_shr:{sh} row_mask:0xf bank_mask:0xf bound_ctrl:0")
    p("s_nop 1"); p(f"v_add_f32_dpp v{r}, v{r}, v{r} row_bcast:15 row_mask:0xa bank_mask:0xf")
    p("s_nop 1"); p(f"v_add_f32_dpp v{r}, v{r}, v{r} row_bcast:31 row_mask:0xc bank_mask:0xf")

def gen_ln():
    p = Prog(); begin(p, "ln_kernel")
    p.c("LayerNorm (no affine), one row per wave; writes xn in MFMA-fragment order; zeroes the hand-off flags")
    p("""s_cmp_ge_u32 s2, 256
    s_cbranch_scc1 L_ln_end""")
    stamp(p, 0)
    p("""s_load_dwordx2 s[4:5], s[0:1], 0
    s_load_dwordx2 s[6:7], s[0:1], 80
    v_lshrrev_b32 v1, 6, v0
    v_and_b32 v2, 63, v0
    s_lshl_b32 s3, s2, 3
    v_add_u32 v3, s3, v1
    v_lshlrev_b32 v12, 11, v3
    v_lshrrev_b32 v13, 2, v2
    v_and_b32 v14, 3, v2
    v_lshl_add_u32 v12, v13, 6, v12
    v_lshl_add_u32 v12, v14, 3, v12
    s_waitcnt lgkmcnt(0)""")
    srd(p, 8, 4, 2048 * 1024 * 2)
    srd(p, 12, 6, WS_BYTES)
    p(VM("x", "buffer_load_dwordx2 v[4:5], v12, s[8:11], 0 offen"))
    p(VM("x", "buffer_load_dwordx2 v[6:7], v12, s[8:11], 0 offen offset:32"))
    p(VM("x", "buffer_load_dwordx2 v[8:9], v12, s[8:11], 0 offen offset:1024"))
    p(VM("x", "buffer_load_dwordx2 v[10:11], v12, s[8:11], 0 offen offset:1056"))
    p.c("output offset: t*524288 + kstep*16384 + qb16*1024 + g*256 + (row%16)*16")
    p("""v_lshrrev_b32 v15, 8, v3
    v_lshlrev_b32 v15, 19, v15
    v_lshl_add_u32 v15, v13, 14, v15
    v_bfe_u32 v32, v3, 4, 4
    v_lshl_add_u32 v15, v32, 10, v15
    v_lshl_add_u32 v15, v14, 8, v15
    v_and_b32 v32, 15, v3
    v_lshl_add_u32 v15, v32, 4, v15
    s_mov_b32 s16, 0x40000
    s_cmp_lg_u32 s2, 0
    s_cbranch_scc1 L_ln_noflag
    v_cmp_gt_u32 vcc, 128, v0
    s_nop 1
    s_and_saveexec_b64 s[18:19], vcc
    s_cbranch_execz L_ln_flagdone
    v_lshlrev_b32 v32, 7, v0
    v_mov_b32 v33, 0""")
    p(f"s_mov_b32 s17, {FLAG_BASE:#x}")
    p("buffer_store_dword v33, v32, s[12:15], s17 offen")
    p("L_ln_flagdone:")
    p("s_mov_b64 exec, s[18:19]")
    p("s_waitcnt vmcnt(0)")
    p("L_ln_noflag:")
    p("s_waitcnt vmcnt(0)")
    for i in range(8):
        p(f"v_lshlrev_b32 v{16+2*i}, 16, v{4+i}")
        p(f"v_and_b32 v{17+2*i}, 0xffff0000, v{4+i}")
    p("v_add_f32 v32, v16, v17")
    for i in range(18, 32): p(f"v_add_f32 v32, v32, v{i}")
    wave_sum(p, 32)
    p("""s_nop 0
    v_readlane_b32 s20, v32, 63
    s_nop 1
    v_mov_b32 v33, s20
    v_mul_f32 v33, 0x3a800000, v33""")
    p("v_sub_f32 v34, v16, v33"); p("v_mul_f32 v32, v34, v34")
    for i in range(17, 32):
        p(f"v_sub_f32 v34, v{i}, v33"); p("v_fmac_f32 v32, v34, v34")
    wave_sum(p, 32)
    p("""s_nop 0
    v_readlane_b32 s20, v32, 63
    s_nop 1
    v_mov_b32 v34, s20
    v_mul_f32 v34, 0x3a800000, v34
    v_cvt_pk_bf16_f32 v33, v33, v34
    v_and_b32 v34, 0xffff0000, v33
    v_lshlrev_b32 v33, 16, v33""")
    p(f"v_add_f32 v34, {f32(1e-5):#x}, v34")
    p("""v_cvt_pk_bf16_f32 v34, v34, v34
    v_lshlrev_b32 v34, 16, v34
    v_sqrt_f32 v34, v34
    s_nop 0
    v_cvt_pk_bf16_f32 v34, v34, v34
    v_lshlrev_b32 v34, 16, v34
    v_rcp_f32 v34, v34""")
    for i in range(8):
        p(f"v_sub_f32 v{16+2*i}, v{16+2*i}, v33")
        p(f"v_sub_f32 v{17+2*i}, v{17+2*i}, v33")
        p(f"v_cvt_pk_bf16_f32 v35, v{16+2*i}, v{17+2*i}")
        p(f"v_lshlrev_b32 v{16+2*i}, 16, v35")
        p(f"v_and_b32 v{17+2*i}, 0xffff0000, v35")
        p(f"v_mul_f32 v{16+2*i}, v{16+2*i}, v34")
        p(f"v_mul_f32 v{17+2*i}, v{17+2*i}, v34")
        p(f"v_cvt_pk_bf16_f32 v{4+i}, v{16+2*i}, v{17+2*i}")
    p("buffer_store_dwordx4 v[4:7], v15, s[12:15], 0 offen")
    p("buffer_store_dwordx4 v[8:11], v15, s[12:15], s16 offen")
    stamp_out(p, 0, 2, 12, 16)
    p("L_ln_end:")
    p("s_endpgm")
    return p, desc("ln_kernel", 40, 96, 40)

M16 = "v_mfma_f32_16x16x32_bf16"
M32 = "v_mfma_f32_32x32x16_bf16"
def gen_attn(opt):
    p = Prog(); begin(p, "attn_kernel")
    vX = 1; vWd = [2, 3, 4, 5]; vLane = 6; vTmp = 7
    vT = list(range(8, 16)); WF = 16; XF = 32
    vK = list(range(100, 108)); vV = list(range(108, 112)); vKd = [112, 113]; vVd = 114; vSt = 115; vPf = 115
    ET = 116; vL = [124, 125]; vLu = [126, 127]
    def S(par, q): return 128 + 32 * par + 16 * q
    def P(par, t, q): return 192 + 16 * par + 8 * t + 4 * q
    def NM(q): return 224 + 16 * q
    def accQ(d, qb): return (d * 4 + qb) * 4
    def accH(i, qb): return 128 + (i * 4 + qb) * 4
    def O(db, q): return (db * 2 + q) * 16
    def QF(q, s): return 128 + (q * 8 + s) * 4
    def KF(s): return 192 + 4 * s
    def VF(f): return 224 + 4 * f
    sW = 3; rXN = 8; rWq = 12; rW1 = 16; rK = 20; rV = 24; rWS = 28
    sX = 36; sWq = 37; sW1 = 38; sCnt = 39; sKV = 40; sM1 = 41; sMK = 42; sMV = 43; sThr = 44; sH = 45; sT = 46
    sHo = 47; sHs = 48; sOo = 49; sVo = 50; sSite = 51; sPo = 66; sP2 = 67
    PH1 = 65536; VRING = 32768

    p.c("fused: [Q | relu(H)] = xn @ [Wq_h | W1 slice]  then flash attention for (head h, 256 query rows)")
    p("""s_cmp_ge_u32 s2, 256
    s_cbranch_scc1 L_a_end""")
    stamp(p, 0)
    p("""s_load_dwordx4 s[52:55], s[0:1], 8
    s_load_dwordx2 s[56:57], s[0:1], 24
    s_load_dwordx2 s[58:59], s[0:1], 48
    s_load_dwordx2 s[60:61], s[0:1], 80
    s_load_dwordx2 s[62:63], s[0:1], 32
    s_load_dwordx2 s[64:65], s[0:1], 56
    v_lshrrev_b32 v7, 6, v0
    v_and_b32 v6, 63, v0
    s_and_b32 s4, s2, 7
    s_lshr_b32 s5, s2, 3
    v_readfirstlane_b32 s3, v7
    s_lshl_b32 s45, s4, 2
    s_and_b32 s4, s5, 3
    s_add_u32 s45, s45, s4
    s_lshr_b32 s46, s5, 2""")
    p(f"s_lshl_b32 s4, s{sW}, 12")
    p(f"v_lshlrev_b32 v{vX}, 4, v{vLane}")
    p(f"v_mov_b32 v{vSt}, v{vX}")
    p(f"v_add_u32 v{vX}, s4, v{vX}")
    p(f"s_lshl_b32 s{sX}, s{sT}, 19")
    p(f"""v_lshrrev_b32 v96, 4, v{vLane}
    v_bfe_u32 v97, v{vLane}, 1, 3
    v_and_b32 v98, 1, v{vLane}
    s_lshl_b32 s4, s{sW}, 3
    s_and_b32 s5, s{sH}, 1
    s_movk_i32 s6, 7168""")
    for i in range(2):
        p(f"""v_add_u32 v99, {4*i}, v96
        v_xor_b32 v16, v97, v99
        v_add_u32 v99, s4, v99
        v_lshlrev_b32 v17, 13, v99
        v_lshl_add_u32 v17, v16, 5, v17
        v_lshl_add_u32 v{vWd[i]}, v98, 4, v17
        v_add_u32 v18, s5, v16
        v_cmp_eq_u32 vcc, 7, v18
        v_mul_lo_u32 v17, v99, s6
        s_nop 0
        v_cndmask_b32 v18, v18, 0, vcc
        v_cmp_eq_u32 vcc, 7, v16
        v_lshl_add_u32 v17, v18, 5, v17
        v_lshl_add_u32 v17, v98, 4, v17
        v_mov_b32 v18, 0x40000000
        v_cndmask_b32 v{vWd[2+i]}, v17, v18, vcc""")
    p(f"""v_lshrrev_b32 v96, 2, v{vLane}
    v_and_b32 v97, 3, v{vLane}
    v_and_b32 v98, 7, v96
    v_lshlrev_b32 v99, 8, v96
    v_lshl_add_u32 v99, v98, 5, v99
    v_lshl_add_u32 v99, v97, 3, v99
    v_add_u32 v99, {PH1:#x}, v99""")
    for u in range(8): p(f"v_xor_b32 v{vT[u]}, {u*32}, v99")
    p(f"""v_and_b32 v96, 31, v{vLane}
    v_lshrrev_b32 v97, 5, v{vLane}
    v_and_b32 v98, 15, v{vLane}
    v_xor_b32 v97, v97, v98
    v_lshlrev_b32 v99, 8, v96
    v_lshl_add_u32 v99, v97, 4, v99""")
    for s in range(8): p(f"v_xor_b32 v{vK[s]}, {s*32}, v99")
    p(f"""v_lshrrev_b32 v96, 5, v{vLane}
    v_bfe_u32 v97, v{vLane}, 2, 2
    v_lshl_add_u32 v96, v96, 2, v97
    v_lshlrev_b32 v99, 8, v96
    v_lshl_add_u32 v99, v97, 6, v99
    v_bfe_u32 v96, v{vLane}, 4, 1
    v_lshl_add_u32 v99, v96, 5, v99
    v_and_b32 v96, 3, v{vLane}
    v_lshl_add_u32 v99, v96, 3, v99
    v_add_u32 v99, {VRING:#x}, v99""")
    for db in range(4): p(f"v_xor_b32 v{vV[db]}, {db*64}, v99")
    p(f"""v_lshrrev_b32 v96, 4, v{vLane}
    v_and_b32 v97, 15, v{vLane}
    s_lshl_b32 s4, s{sW}, 3
    v_add_u32 v96, s4, v96""")
    for i in range(2):
        p(f"""v_add_u32 v98, {4*i}, v96
        v_and_b32 v98, 15, v98
        v_xor_b32 v98, v98, v97
        v_lshlrev_b32 v99, 8, v96
        v_lshl_add_u32 v{vKd[i]}, v98, 4, v99""")
    p(f"""v_lshrrev_b32 v98, 4, v{vLane}
    v_bfe_u32 v97, v{vLane}, 2, 2
    v_xor_b32 v98, v98, v97
    v_lshlrev_b32 v99, 8, v96
    v_lshl_add_u32 v99, v98, 6, v99
    v_and_b32 v97, 3, v{vLane}
    v_lshl_add_u32 v{vVd}, v97, 4, v99""")
    p(f"""s_lshl_b32 s{sMK}, s{sW}, 11
    s_add_u32 s{sMV}, s{sMK}, {VRING:#x}
    s_add_u32 s{sM1}, s{sMK}, {PH1:#x}
    s_mov_b32 s{sWq}, 0
    s_mov_b32 s{sW1}, 0
    s_mov_b32 s{sKV}, 0
    s_mov_b32 s{sThr}, 0x45800000
    s_waitcnt lgkmcnt(0)""")
    srd(p, rXN, 60, WS_BYTES); srd(p, rWS, 60, WS_BYTES)
    p(f"s_lshl_b32 s4, s{sH}, 8"); srd(p, rWq, 56, 1024 * 4096 * 2, 4)
    p(f"s_mul_i32 s4, s{sH}, 224"); srd(p, rW1, 58, 1024 * 3584 * 2, 4)
    p(f"s_lshl_b32 s4, s{sH}, 19"); srd(p, rK, 52, 32 * 2048 * 256, 4); srd(p, rV, 54, 32 * 2048 * 256, 4)
    p(f"""s_lshl_b32 s4, s{sT}, 1
    s_lshr_b32 s5, s{sW}, 1
    s_add_u32 s4, s4, s5
    s_and_b32 s5, s{sW}, 1
    s_lshl_b32 s5, s5, 12
    s_mul_i32 s6, s{sH}, 7
    s_add_u32 s6, s6, 1
    s_lshr_b32 s6, s6, 1
    s_mul_i32 s7, s4, 112
    s_add_u32 s7, s7, s6
    s_lshl_b32 s7, s7, 13
    s_add_u32 s7, s7, s5
    s_add_u32 s{sHo}, s7, {H_BASE:#x}
    s_and_b32 s6, s{sH}, 1
    s_cmp_eq_u32 s6, 0
    s_mov_b32 s6, {3*8192:#x}
    s_cselect_b32 s6, s6, {(-8192 + 8) & 0xffffffff:#x}
    s_add_u32 s{sHs}, s{sHo}, s6
    s_lshl_b32 s7, s4, 7
    s_lshl_b32 s6, s{sH}, 2
    s_add_u32 s7, s7, s6
    s_lshl_b32 s7, s7, 13
    s_add_u32 s7, s7, s5
    s_add_u32 s{sOo}, s7, {O_BASE:#x}""")

    def x_load(j, b):
        return VM(f"x{j}", f"buffer_load_dwordx4 {v(XF + (j % 4) * 16 + 4 * b, 4)}, v{vX}, s[{rXN}:{rXN+3}], s{sX} offen offset:{b*1024}")
    def w_m0(j, i):
        return f"s_add_u32 m0, s{sM1}, {(j % 4) * 16384 + (i >> 1) * 8192 + (i & 1) * 1024}"
    def w_dma(j, i):
        r, so = (rWq, sWq) if i < 2 else (rW1, sW1)
        return VM(f"w{j}", f"buffer_load_dwordx4 v{vWd[i]}, s[{r}:{r+3}], s{so} offen lds")
    def t_read(F, half):
        j, n = divmod(F, 15)
        part, u = divmod(n, 8)
        off = (j % 4) * 16384 + part * 8192 + half * 4096
        return DS(f"wf{F}", f"ds_read_b64_tr_b16 {v(WF + (F % 4) * 4 + 2 * half, 2)}, v{vT[u]} offset:{off}")
    def k_m0(u): return f"s_add_u32 m0, s{sMK}, {(u % 4) * 8192}"
    def v_m0(u): return f"s_add_u32 m0, s{sMV}, {(u % 4) * 8192}"
    def k_dma(u, i, so): return VM(f"k{u}", f"buffer_load_dwordx4 v{vKd[i]}, s[{rK}:{rK+3}], s{so} offen offset:{i*1024} lds")
    def v_dma(u, i, so): return VM(f"v{u}", f"buffer_load_dwordx4 v{vVd}, s[{rV}:{rV+3}], s{so} offen offset:{i*1024} lds")

    for j in range(3):
        for b in range(4): p(x_load(j, b))
        p(f"s_add_u32 s{sX}, s{sX}, 16384")
        for i in range(4 if j < 2 else 3):
            p(w_m0(j, i)); p("s_nop 0"); p(w_dma(j, i))
        if j < 2:
            p(f"s_add_u32 s{sWq}, s{sWq}, {32*8192}"); p(f"s_add_u32 s{sW1}, s{sW1}, {32*7168}")
    p(f"s_add_u32 s{sWq}, s{sWq}, {32*8192}")
    srd(p, 84, 62, 4096 * 1024 * 2); srd(p, 88, 64, 3584 * 1024 * 2)
    p(f"""s_lshl_b32 s4, s2, 2
    s_add_u32 s4, s4, s{sW}
    s_lshl_b32 s{sPo}, s4, 13
    s_mul_i32 s{sP2}, s4, 7168""")
    for i in range(240): p(f"v_accvgpr_write_b32 a{i}, 0")
    p(WV("w0", "x0")); p("s_barrier")
    stamp(p, 1)
    for F in range(3): p(t_read(F, 0)); p(t_read(F, 1))
    p(WL("wf0"))

    kvpre = [("k", 0), ("k", 1), ("k", 2), ("v", 0), ("k", 3), ("v", 1)]
    def ph1_step(j, loop_tail=None):
        mf = []; g = [[] for _ in range(60)]
        for n in range(15):
            F = 15 * j + n
            for qb in range(4):
                acc = accQ(n, qb) if n < 8 else accH(n - 8, qb)
                mf.append(f"{M16} {a_(acc,4)}, {v(WF + (F % 4) * 4, 4)}, {v(XF + (j % 4) * 16 + 4 * qb, 4)}, {a_(acc,4)}")
            if F + 3 < 15 * 32:
                g[4*n].append(t_read(F + 3, 0)); g[4*n+1].append(t_read(F + 3, 1))
            if F + 1 < 15 * 32:
                g[4*n+3].append(WL(f"wf{F+1}"))
        if j + 2 < 32:
            g[1].insert(0, w_m0(j + 2, 3)); g[2].append(w_dma(j + 2, 3))
            g[4].insert(0, f"s_add_u32 s{sW1}, s{sW1}, {32*7168}")
        if j + 3 < 32:
            for b in range(4): g[6 + 4 * b].append(x_load(j + 3, b))
            g[20].insert(0, f"s_add_u32 s{sX}, s{sX}, 16384")
            for i in range(3):
                g[49 + 4 * i].insert(0, w_m0(j + 3, i)); g[50 + 4 * i].append(w_dma(j + 3, i))
            g[56].insert(0, f"s_add_u32 s{sWq}, s{sWq}, {32*8192}")
        else:
            for q in range(2):
                kind, u = kvpre[(j - 29) * 2 + q]
                g0 = 6 + 16 * q
                g[g0 - 2].insert(0, f"s_mov_b32 s{sVo}, {u * 8192}")
                g[g0 - 1].insert(0, k_m0(u) if kind == "k" else v_m0(u))
                for i in range(2):
                    g[g0 + 4 * i].append(k_dma(u, i, sVo) if kind == "k" else v_dma(u, i, sVo))
        if j + 1 < 32:
            g[46].append(WV(f"w{j+1}", f"x{j+1}"))
            g[47].append("s_barrier")
        if loop_tail: g[59].extend(loop_tail)
        p.block(mf, g)
    def ph1_body(it):
        p(tr_a())
        for q in range(4):
            if q == 3: p(tr_b(98, sCnt, 32, vLane, 96))
            ph1_step(4 * it + q, [f"s_sub_u32 s{sCnt}, s{sCnt}, 1", f"s_cmp_lg_u32 s{sCnt}, 0", "s_cbranch_scc1 L_ph1"] if q == 3 else None)
    p.loop(7, ph1_body, "L_ph1", sCnt)
    if "st_a" in opt: stamp(p, 5)
    for j in range(28, 32): ph1_step(j)

    p("s_nop 7")
    stamp(p, 2)
    T = 16
    def hq_read(dst, acc):
        for e in range(4): p(f"v_accvgpr_read_b32 v{dst+e}, a{acc+e}")
    k = 0
    for pr in range(3):
        if pr: p(f"s_add_u32 s{sHo}, s{sHo}, 8192")
        for qb in range(4):
            b = T + (k % 2) * 16; k += 1
            hq_read(b, accH(2 * pr, qb)); hq_read(b + 4, accH(2 * pr + 1, qb))
            for e in range(8): p(f"v_max_f32 v{b+e}, 0, v{b+e}")
            for e in range(4): p(f"v_cvt_pk_bf16_f32 v{b+8+e}, v{b+2*e}, v{b+2*e+1}")
            p(VM("hst", f"buffer_store_dwordx4 {v(b+8,4)}, v{vSt}, s[{rWS}:{rWS+3}], s{sHo} offen offset:{qb*1024}"))
    for qb in range(4):
        b = T + (k % 2) * 16; k += 1
        hq_read(b, accH(6, qb))
        for e in range(4): p(f"v_max_f32 v{b+e}, 0, v{b+e}")
        for e in range(2): p(f"v_cvt_pk_bf16_f32 v{b+8+e}, v{b+2*e}, v{b+2*e+1}")
        p(VM("hst", f"buffer_store_dwordx2 {v(b+8,2)}, v{vSt}, s[{rWS}:{rWS+3}], s{sHs} offen offset:{qb*1024}"))
    p(f"s_mov_b32 s4, {QSCALE:#x}")
    for q in range(2):
        for d in range(8):
            b = 48 + (k % 2) * 16; k += 1
            hq_read(b, accQ(d, 2 * q)); hq_read(b + 4, accQ(d, 2 * q + 1))
            for e in range(8): p(f"v_mul_f32 v{b+e}, s4, v{b+e}")
            for e in range(4): p(f"v_cvt_pk_bf16_f32 v{b+8+e}, v{b+2*e}, v{b+2*e+1}")
            p("s_nop 0")
            p(f"v_permlane16_swap_b32 v{b+8}, v{b+10}")
            p(f"v_permlane16_swap_b32 v{b+9}, v{b+11}")
            for e in range(4): p(f"v_accvgpr_write_b32 a{QF(q,d)+e}, v{b+8+e}")
    for i in range(128): p(f"v_accvgpr_write_b32 a{i}, 0")

    def k_read(u, s): return DS(f"kf{u}", f"ds_read_b128 {a_(KF(s),4)}, v{vK[s]} offset:{(u % 4) * 8192}")
    def v_read(u, f, half):
        t, db = divmod(f, 4)
        return DS(f"vf{u}_{t}", f"ds_read_b64_tr_b16 {a_(VF(f) + 2 * half, 2)}, v{vV[db]} offset:{(u % 4) * 8192 + t * 4096 + half * 2048}")
    def qk_mf(u, first_c0=False):
        r = []
        for s in range(8):
            for q in range(2):
                d = v(S(u % 2, q), 16)
                c = ("0" if first_c0 else v(NM(q), 16)) if s == 0 else d
                r.append(f"{M32} {d}, {a_(KF(s),4)}, {a_(QF(q,s),4)}, {c}")
        return r
    def pv_mf(u):
        r = []
        for t in range(2):
            for db in range(4):
                for q in range(2):
                    r.append(f"{M32} {a_(O(db,q),16)}, {a_(VF(4*t+db),4)}, {v(P(u % 2, t, q), 4)}, {a_(O(db,q),16)}")
        return r
    def rowmax(par, q, dst, tmp):
        s = S(par, q)
        p(f"v_max3_f32 v{dst}, v{s}, v{s+1}, v{s+2}")
        for i in range(3, 15, 2): p(f"v_max3_f32 v{dst}, v{dst}, v{s+i}, v{s+i+1}")
        p(f"v_max_f32 v{dst}, v{dst}, v{s+15}")
        p(f"v_mov_b32 v{tmp}, v{dst}")
        p("s_nop 1")
        p(f"v_permlane32_swap_b32 v{dst}, v{tmp}")
        p(f"v_max_f32 v{dst}, v{dst}, v{tmp}")

    p(WV("k0", "k1")); p("s_barrier")
    stamp(p, 3)
    for s in range(8): p(k_read(0, s))
    p(WL("kf0"))
    mf = qk_mf(0, True); g = [[] for _ in range(16)]
    for s in range(8): g[2 * s + 1].append(k_read(1, s))
    p.block(mf, g)
    p("s_nop 11")
    for q in range(2):
        rowmax(0, q, 16, 17)
        for i in range(16): p(f"v_sub_f32 v{S(0,q)+i}, v{S(0,q)+i}, v16")
        for i in range(16): p(f"v_sub_f32 v{NM(q)+i}, 0, v16")
        p(f"v_mov_b32 v{vL[q]}, 0")
    p(f"s_mov_b32 s{sKV}, {4*8192}")
    p(f"s_mov_b32 s{sVo}, {2*8192}")
    p(WL("kf1"))

    rare_sites = []
    def sm_items(u):
        par = u % 2
        it = []
        order = [(q, 8 * t + r) for t in range(2) for q in range(2) for r in range(8)]
        egap = list(range(0, 14)) + [14, 14, 15, 15] + list(range(16, 30))
        seen = [0, 0]; prev = [None, None]
        for e, (q, r) in enumerate(order):
            tmp = ET + e % 8
            it.append((egap[e], 1, f"v_exp_f32 v{tmp}, v{S(par,q)+r}"))
            ag = egap[e] + 1
            if seen[q] == 0: prev[q] = tmp
            elif seen[q] == 1: it.append((ag, 2, f"v_add_f32 v{vLu[q]}, v{prev[q]}, v{tmp}"))
            else: it.append((ag, 2, f"v_add_f32 v{vLu[q]}, v{vLu[q]}, v{tmp}"))
            seen[q] += 1
            if r % 2 == 1:
                it.append((ag, 3, f"v_cvt_pk_bf16_f32 v{P(par, r // 8, q) + (r % 8) // 2}, v{ET + (e-1) % 8}, v{tmp}"))
        return it
    def slot(u, loop_tail=None, site=None, pf=None):
        do_qk = u + 1 < 64; do_pv = u >= 1
        mq = qk_mf(u + 1) if do_qk else [None] * 16
        mp = pv_mf(u - 1) if do_pv else [None] * 16
        mf = mq + mp
        sal = [[] for _ in range(32)]; mem = [[] for _ in range(32)]; val = [[] for _ in range(32)]
        if do_pv:
            for f in range(4, 8):
                for hf in range(2): mem[2 * (f - 4) + hf].append(v_read(u - 1, f, hf))
        if u + 4 < 64:
            sal[7].append(k_m0(u + 4))
            mem[8].append(k_dma(u + 4, 0, sKV)); mem[10].append(k_dma(u + 4, 1, sKV))
            sal[12].append(f"s_add_u32 s{sKV}, s{sKV}, 8192")
        if u + 2 < 64:
            sal[11].append(v_m0(u + 2))
            mem[12].append(v_dma(u + 2, 0, sVo)); mem[13].append(v_dma(u + 2, 1, sVo))
            sal[16].append(f"s_add_u32 s{sVo}, s{sVo}, 8192")
        if pf == 0:
            mem[9].append(VM("pf", f"buffer_load_dword v97, v{vPf}, s[84:87], s{sPo} offen")); sal[17].append(f"s_add_u32 s{sPo}, s{sPo}, 640")
        if pf == 2:
            mem[9].append(VM("pf", f"buffer_load_dword v97, v{vPf}, s[88:91], s{sP2} offen")); sal[17].append(f"s_add_u32 s{sP2}, s{sP2}, 512")
        tags = [f"v{u}"] + ([f"k{u+2}"] if u + 2 < 64 else [])
        sal[14].append(WV(*tags))
        if do_pv: sal[15].append(WL(f"vf{u-1}_1"))
        sal[15].append("s_barrier")
        if u + 2 < 64:
            for s in range(8): mem[16 + s].append(k_read(u + 2, s))
        for f in range(4):
            for hf in range(2): mem[24 + 2 * f + hf].append(v_read(u, f, hf))
        if u + 2 < 64: sal[31].append(WL(f"kf{u+2}"))
        for gp, pri, txt in sorted(sm_items(u), key=lambda x: (x[0], x[1])): val[gp].append(txt)
        val[31].append(f"v_max_f32 v{ET}, v{vLu[0]}, v{vLu[1]}")
        val[31].append(f"v_cmp_nge_f32 vcc, s{sThr}, v{ET}")
        lab = site if site else f"{u}"
        post = [f"s_cbranch_vccnz L_rare_{u % 2}", f"L_back_{lab}:"]
        if (lab, u % 2, bool(loop_tail)) not in rare_sites: rare_sites.append((lab, u % 2, bool(loop_tail)))
        sal[28].append(f"s_mov_b32 s{sSite}, {rare_sites.index((lab, u % 2, bool(loop_tail)))}")
        post += [f"v_add_f32 v{vL[0]}, v{vL[0]}, v{vLu[0]}", f"v_add_f32 v{vL[1]}, v{vL[1]}, v{vLu[1]}"]
        if loop_tail:
            sal[29].append(loop_tail[0]); sal[30].append(loop_tail[1]); post.append(loop_tail[2])
        for i in range(32):
            if mf[i]: p(mf[i])
            p(sal[i]); p(mem[i]); p(val[i])
        p(post)
    if "st_c" in opt: stamp(p, 5)
    slot(0); slot(1)
    if "st_d" in opt: stamp(p, 5)
    def att_body(it):
        p(tr_a())
        for q in range(4):
            if q == 3: p(tr_b(98, sCnt, 0, vLane, 96))
            slot(2 + 4 * it + q, [f"s_sub_u32 s{sCnt}, s{sCnt}, 1", f"s_cmp_lg_u32 s{sCnt}, 0", "s_cbranch_scc1 L_att"] if q == 3 else None, site=f"l{q}", pf=None if "nopf" in opt else q)
    p.loop(14, att_body, "L_att", sCnt)
    if "st_b" in opt: stamp(p, 5)
    for u in range(58, 64): slot(u)
    for f in range(4, 8):
        for hf in range(2): p(v_read(63, f, hf))
    mp = pv_mf(63)
    p(WL("vf63_0"))
    for i in range(16):
        if i == 8: p(WL("vf63_1"))
        p(mp[i])
    stamp(p, 4)
    for q in range(2):
        p(f"v_mov_b32 v16, v{vL[q]}")
        p("s_nop 1")
        p(f"v_permlane32_swap_b32 v{vL[q]}, v16")
        p(f"v_add_f32 v{vL[q]}, v{vL[q]}, v16")
        p(f"v_rcp_f32 v{vL[q]}, v{vL[q]}")
    p(f"""v_bfe_u32 v16, v{vLane}, 4, 1
    v_bfe_u32 v17, v{vLane}, 5, 1
    v_and_b32 v18, 15, v{vLane}
    v_lshlrev_b32 v18, 4, v18
    v_lshl_add_u32 v18, v16, 9, v18
    v_lshl_add_u32 v{vSt}, v17, 8, v18
    s_nop 4""")
    k = 0
    for db in range(4):
        if db: p(f"s_add_u32 s{sOo}, s{sOo}, 8192")
        for q in range(2):
            b = 16 + (k % 2) * 32; k += 1
            for r in range(16): p(f"v_accvgpr_read_b32 v{b+r}, a{O(db,q)+r}")
            for r in range(16): p(f"v_mul_f32 v{b+r}, v{b+r}, v{vL[q]}")
            dst = {0: 0, 1: 1, 4: 2, 5: 3, 2: 4, 3: 5, 6: 6, 7: 7}
            for c in range(8): p(f"v_cvt_pk_bf16_f32 v{b+16+dst[c]}, v{b+2*c}, v{b+2*c+1}")
            p("s_nop 0")
            for c in range(4): p(f"v_permlane16_swap_b32 v{b+16+c}, v{b+20+c}")
            p(VM("ost", f"buffer_store_dwordx4 {v(b+16,4)}, v{vSt}, s[{rWS}:{rWS+3}], s{sOo} offen offset:{2*q*1024}"))
            p(VM("ost", f"buffer_store_dwordx4 {v(b+20,4)}, v{vSt}, s[{rWS}:{rWS+3}], s{sOo} offen offset:{(2*q+1)*1024}"))
    tr_out(p, 1, rWS, 98, 20)
    stamp_out(p, 1, 7, rWS, 16)
    p("L_a_end:")
    p("s_endpgm")
    main_trace = p.trace
    errs = check(main_trace, "attn")
    for par in range(2):
        has_next = True
        p.trace = []
        p.label(f"L_rare_{par}")
        p("s_nop 15")
        for q in range(2):
            rowmax(par, q, 16, 17)
            p("v_max_f32 v16, 0, v16")
            p("v_sub_f32 v17, 0, v16")
            p("v_exp_f32 v17, v17")
            for i in range(16):
                p(f"v_sub_f32 v{S(par,q)+i}, v{S(par,q)+i}, v16")
                if has_next: p(f"v_sub_f32 v{S(1-par,q)+i}, v{S(1-par,q)+i}, v16")
                p(f"v_sub_f32 v{NM(q)+i}, v{NM(q)+i}, v16")
            p(f"v_mul_f32 v{vL[q]}, v{vL[q]}, v17")
            for db in range(4):
                for r in range(0, 16, 4):
                    for e in range(4): p(f"v_accvgpr_read_b32 v{20+e}, a{O(db,q)+r+e}")
                    for e in range(4): p(f"v_mul_f32 v{20+e}, v{20+e}, v17")
                    for e in range(4): p(f"v_accvgpr_write_b32 a{O(db,q)+r+e}, v{20+e}")
            for i in range(16): p(f"v_exp_f32 v{24+i}, v{S(par,q)+i}")
            p("s_nop 0")
            p(f"v_add_f32 v{vLu[q]}, v24, v25")
            for i in range(2, 16): p(f"v_add_f32 v{vLu[q]}, v{vLu[q]}, v{24+i}")
            for i in range(8): p(f"v_cvt_pk_bf16_f32 v{P(par, i // 4, q) + i % 4}, v{24+2*i}, v{25+2*i}")
        mine = [(i, x) for i, x in enumerate(rare_sites) if x[1] == par]
        for i, (lab, _, lt) in mine:
            if lt: continue
            p(f"s_cmp_eq_u32 s{sSite}, {i}"); p(f"s_cbranch_scc1 L_back_{lab}")
        lts = [x for _, x in mine if x[2]]
        if lts:
            p(f"s_cmp_lg_u32 s{sCnt}, 0"); p(f"s_branch L_back_{lts[0][0]}")
        else:
            p("s_endpgm")
        errs += check(p.trace, f"rare{par}")
    p.trace = []
    return p, desc("attn_kernel", 512, 102, 256), errs

def gen_out(opt):
    p = Prog(); begin(p, "out_kernel")
    vLane = 1; vA = [2, 3]; vT = [list(range(4, 8)), list(range(8, 12))]; vWd = [12, 13]; vAd = 14; vXo = 15
    def AF(buf, nb): return 16 + buf * 16 + nb * 4
    def BF(buf, rb): return 48 + buf * 16 + rb * 4
    XR = 80
    def acc(nb, rb): return (nb * 4 + rb) * 4
    sW = 3; rAct = 8; rW = 12; rX = 16; rOut = 20
    sA = 24; sWo = 25; sCnt = 26; sM = 27; sTy = 28; sPair = 29; sG = 30; sRT = 31; sCT = 32
    sBase = 33; sK = 34; sT = 35; sTog = 52; sAn = 53
    RW = 3 if "rw8" in opt else 4
    p.c("128x128 tiles: workgroups of XCD-group 0 compute g = silu(H @ W2), group 1 compute s = O @ Wo and finish out = x + s*g")
    p("""s_cmp_ge_u32 s2, 256
    s_cbranch_scc1 L_c_end""")
    stamp(p, 0)
    p("""s_load_dwordx2 s[36:37], s[0:1], 0
    s_load_dwordx2 s[38:39], s[0:1], 32
    s_load_dwordx2 s[40:41], s[0:1], 56
    s_load_dwordx2 s[42:43], s[0:1], 64
    s_load_dwordx2 s[44:45], s[0:1], 80
    v_lshrrev_b32 v15, 6, v0
    v_and_b32 v1, 63, v0
    s_bfe_u32 s28, s2, 0x10002
    s_lshr_b32 s5, s2, 3
    v_readfirstlane_b32 s3, v15
    s_bfe_u32 s4, s2, 0x10001
    s_lshl_b32 s4, s4, 3
    s_and_b32 s6, s5, 7
    s_add_u32 s31, s4, s6
    s_and_b32 s4, s2, 1
    s_lshl_b32 s4, s4, 2
    s_lshr_b32 s6, s5, 3
    s_add_u32 s32, s4, s6
    s_lshl_b32 s29, s31, 3
    s_add_u32 s29, s29, s32""")
    if "same" in opt: p("s_mov_b32 s31, 0"); p("s_mov_b32 s32, 0")
    p(f"""s_lshr_b32 s4, s{sW}, 1
    s_lshl_b32 s4, s4, 13
    s_add_u32 s4, s4, 2048
    v_lshlrev_b32 v{vAd}, 4, v{vLane}
    v_add_u32 v{vA[0]}, s4, v{vAd}
    v_add_u32 v{vA[1]}, 0x10000, v{vA[0]}""")
    p(f"""v_lshrrev_b32 v16, 5, v{vLane}
    v_bfe_u32 v17, v{vLane}, 2, 3
    v_and_b32 v18, 3, v{vLane}
    v_lshlrev_b32 v19, 12, v16
    v_lshl_add_u32 v19, v17, 8, v19
    v_lshl_add_u32 v19, v17, 5, v19
    v_lshl_add_u32 v19, v18, 3, v19
    s_and_b32 s4, s{sW}, 1
    s_lshl_b32 s4, s4, 7
    v_xor_b32 v19, s4, v19""")
    for i in range(4):
        p(f"v_xor_b32 v{vT[0][i]}, {i*32}, v19")
        p(f"v_add_u32 v{vT[1][i]}, 0x10000, v{vT[0][i]}")
    p(f"""v_lshrrev_b32 v16, 4, v{vLane}
    v_bfe_u32 v17, v{vLane}, 1, 3
    v_and_b32 v18, 1, v{vLane}
    s_lshl_b32 s4, s{sW}, 3""")
    for i in range(2):
        p(f"""v_add_u32 v19, {4*i}, v16
        v_xor_b32 v20, v17, v19
        v_add_u32 v19, s4, v19
        v_lshlrev_b32 v19, 11, v19
        v_lshl_add_u32 v19, v20, 5, v19
        v_lshl_add_u32 v19, v18, 4, v19
        v_subrev_u32 v{vWd[i]}, {i*1024}, v19""")
    p(f"""s_lshl_b32 s4, s{sW}, 11
    v_add_u32 v{vAd}, s4, v{vAd}
    s_lshl_b32 s{sM}, s{sW}, 12""")
    p(f"""v_and_b32 v16, 15, v{vLane}
    v_lshrrev_b32 v17, 4, v{vLane}
    v_lshlrev_b32 v16, 11, v16
    v_lshl_add_u32 v16, v17, 3, v16
    s_lshl_b32 s4, s{sRT}, 18
    s_lshr_b32 s5, s{sW}, 1
    s_lshl_b32 s5, s5, 17
    s_add_u32 s4, s4, s5
    s_lshl_b32 s5, s{sCT}, 8
    s_add_u32 s4, s4, s5
    s_and_b32 s5, s{sW}, 1
    s_lshl_b32 s5, s5, 7
    s_add_u32 s4, s4, s5
    v_add_u32 v{vXo}, s4, v16
    s_waitcnt lgkmcnt(0)""")
    srd(p, rAct, 44, WS_BYTES); srd(p, rX, 36, 2048 * 2048); srd(p, rOut, 42, 2048 * 2048)
    p(f"""s_cmp_eq_u32 s{sTy}, 0
    s_cselect_b32 s46, s40, s38
    s_cselect_b32 s47, s41, s39
    s_mov_b32 s48, {3584*2048:#x}
    s_mov_b32 s49, 112
    s_mov_b32 s50, {H_BASE - 2048:#x}
    s_cselect_b32 s48, s48, {4096*2048:#x}
    s_cselect_b32 s49, s49, 128
    s_cselect_b32 s50, s50, {O_BASE - 2048:#x}
    s_cselect_b32 s{sCnt}, 12, 14
    s_mul_i32 s4, s{sRT}, s49
    s_lshl_b32 s4, s4, 13
    s_add_u32 s{sBase}, s4, s50
    s_lshl_b32 s5, s{sBase}, 3
    s_lshl_b32 s6, s{sCT}, 8
    s_sub_u32 s{sK}, s6, s5
    s_and_b32 s5, s{sCT}, 3
    s_lshl_b32 s5, s5, 1
    s_add_u32 s5, s5, s{sRT}
    s_and_b32 s5, s5, 7
    s_lshl_b32 s{sT}, s5, {13 + RW - 3}
    s_mov_b32 s{sTog}, 0
    s_add_u32 s{sA}, s{sT}, s{sBase}
    s_lshl3_add_u32 s{sWo}, s{sA}, s{sK}
    s_mov_b32 s{rW}, s46
    s_and_b32 s{rW+1}, s47, 0xffff
    s_mov_b32 s{rW+2}, s48
    s_mov_b32 s{rW+3}, 0x20000
    s_lshl_b32 s4, s{sPair}, 15
    s_lshl_b32 s5, s{sW}, 13
    s_add_u32 s4, s4, s5
    s_add_u32 s{sG}, s4, {G_BASE:#x}""")
    for i in range(8): p(f"s_add_u32 s{56+i}, s{sM}, {i * 16384}")
    def m0(j): return f"s_mov_b32 m0, s{56 + j % 8}"
    def dma(j, i):
        if i < 2: return VM(f"d{j}", f"buffer_load_dwordx4 v{vWd[i]}, s[{rW}:{rW+3}], s{sWo} offen offset:{i*1024} lds")
        return VM(f"d{j}", f"buffer_load_dwordx4 v{vAd}, s[{rAct}:{rAct+3}], s{(sA, sAn)[j % 2]} offen offset:{i*1024} lds")
    def adv(jn):
        w = []
        if jn % 8 == 0 and "norot" not in opt:
            if RW == 4: w = [f"s_add_u32 s{sBase}, s{sBase}, s{sTog}", f"s_xor_b32 s{sTog}, s{sTog}, {16 * 8192:#x}"]
            else: w = [f"s_add_u32 s{sBase}, s{sBase}, {8 * 8192:#x}"]
        d = (sA, sAn)[jn % 2]; o = (sA, sAn)[1 - jn % 2]
        if "norot" in opt: r = [f"s_add_u32 s{d}, s{o}, 8192"]
        else: r = [f"s_add_u32 s{sT}, s{sT}, 8192", f"s_and_b32 s{sT}, s{sT}, {((1 << RW) - 1) * 8192:#x}", f"s_add_u32 s{d}, s{sT}, s{sBase}"]
        return w, r + [f"s_lshl3_add_u32 s{sWo}, s{d}, s{sK}"]
    def b_read(j, i):
        hi, o = divmod((j % 8) * 16384, 65536)
        return DS(f"b{j}", f"ds_read_b128 {v(BF(j % 2, i), 4)}, v{vA[hi]} offset:{o + (i // 2) * 4096 + (i % 2) * 1024}")
    def a_read(j, i, half):
        hi, o = divmod((j % 8) * 16384, 65536)
        return DS(f"a{j}_{i}", f"ds_read_b64_tr_b16 {v(AF(j % 2, i) + 2 * half, 2)}, v{vT[hi][i]} offset:{o + half * 8192}")
    AHEAD = 6
    if "norot" in opt: p(f"s_mov_b32 s{sA}, s{sBase}"); p(f"s_lshl3_add_u32 s{sWo}, s{sA}, s{sK}")
    for j in range(AHEAD):
        p(m0(j)); p("s_nop 0")
        for i in range(4): p(dma(j, i))
        p(list(adv(j + 1)))
    p(m0(AHEAD))
    for i in range(64): p(f"v_accvgpr_write_b32 a{i}, 0")
    p(WV("d0", "d1")); p("s_barrier")
    stamp(p, 1)
    for i in range(4): p(b_read(0, i))
    for i in range(3): p(a_read(0, i, 0)); p(a_read(0, i, 1))
    p(WL("a0_0"))
    NS = 128
    def step(j, loop_tail=None):
        mf = [f"{M16} {a_(acc(nb, rb), 4)}, {v(AF(j % 2, nb), 4)}, {v(BF(j % 2, rb), 4)}, {a_(acc(nb, rb), 4)}" for nb in range(4) for rb in range(4)]
        sal = [[] for _ in range(16)]; g = [[] for _ in range(16)]
        g[1].append(a_read(j, 3, 0)); g[2].append(a_read(j, 3, 1))
        if j + 1 < NS:
            for i, gp in enumerate((3, 5, 6, 7)): g[gp].append(b_read(j + 1, i))
            for i, gp in enumerate((9, 10, 11, 13, 14, 15)): g[gp].append(a_read(j + 1, i // 2, i % 2))
        if j + AHEAD < NS:
            for i in range(4):
                if "nodma" in opt: p.vm.append(f"d{j + AHEAD}")
                else: g[4 * i].append(dma(j + AHEAD, i))
        elif j + AHEAD - NS < 4:
            rb = j + AHEAD - NS
            for nb in range(4):
                g[4 * nb].append(VM("x", f"buffer_load_dwordx2 {v(XR + (nb * 4 + rb) * 2, 2)}, v{vXo}, s[{rX}:{rX+3}], s4 offen offset:{nb*32}"))
        if 0 <= j + 1 + AHEAD - NS < 4: sal[14].append(f"s_mov_b32 s4, {(j + 1 + AHEAD - NS) * 16 * 2048}")
        if j + 1 + AHEAD < NS:
            w, r = adv(j + 1 + AHEAD)
            for x, gp in zip(w, (1, 2)): sal[gp].append(x)
            for x, gp in zip(r, (5, 6, 9, 10)): sal[gp].append(x)
            sal[14].append(m0(j + 1 + AHEAD))
        sal[3].append(WL(f"a{j}_1")); sal[7].append(WL(f"a{j}_2")); sal[11].append(WL(f"a{j}_3"))
        post = []
        if j + 1 < NS:
            sal[15].append(WL(f"a{j+1}_0"))
            if j % 2 == 0 and j + 2 < NS:
                post.append(WV(f"d{j+2}", f"d{j+3}") if j + 3 < NS else WV(f"d{j+2}"))
                post.append("s_barrier")
        if loop_tail:
            sal[13].append(loop_tail[0]); post.append(loop_tail[1])
        g[15].extend(post)
        p.block(mf, [x + y for x, y in zip(sal, g)])
    def body(it):
        p(tr_a())
        for q in range(8):
            if q == 7: p(tr_b(112, sCnt, 0, vLane, 114))
            step(8 * it + q, [f"s_sub_u32 s{sCnt}, s{sCnt}, 1", "s_cbranch_scc0 L_c_loop"] if q == 7 else None)
    p.loop(15, body, "L_c_loop", 51)
    for j in range(120, 128): step(j)
    p("s_nop 7")
    stamp(p, 2); stamp(p, 3)
    tr_out(p, 2, rAct, 112, 114)
    p(f"s_cmp_lg_u32 s{sTy}, 0")
    p("s_cbranch_scc1 L_c_s")
    p(f"s_mov_b32 s4, {f32(-1.4426950408889634):#x}")
    p(f"v_lshlrev_b32 v2, 4, v{vLane}")
    k = 0
    for rb in range(4):
        for np_ in range(2):
            b = 16 + (k % 2) * 24
            for e in range(8): p(f"v_accvgpr_read_b32 v{b+e}, a{acc(2*np_ + e // 4, rb) + e % 4}")
            for e in range(4): p(f"v_cvt_pk_bf16_f32 v{b+8+e}, v{b+2*e}, v{b+2*e+1}")
            for e in range(4):
                p(f"v_lshlrev_b32 v{b+2*e}, 16, v{b+8+e}")
                p(f"v_and_b32 v{b+2*e+1}, 0xffff0000, v{b+8+e}")
            for e in range(8): p(f"v_mul_f32 v{b+8+e}, s4, v{b+e}")
            for e in range(8): p(f"v_exp_f32 v{b+8+e}, v{b+8+e}")
            for e in range(8): p(f"v_add_f32 v{b+8+e}, 1.0, v{b+8+e}")
            for e in range(8): p(f"v_rcp_f32 v{b+8+e}, v{b+8+e}")
            for e in range(8): p(f"v_mul_f32 v{b+e}, v{b+e}, v{b+8+e}")
            for e in range(4): p(f"v_cvt_pk_bf16_f32 v{b+16+e}, v{b+2*e}, v{b+2*e+1}")
            if k == 4: p(f"s_add_u32 s{sG}, s{sG}, 4096")
            p(VM("g", f"buffer_store_dwordx4 {v(b+16,4)}, v2, s[{rAct}:{rAct+3}], s{sG} offen offset:{(k % 4)*1024} sc1"))
            k += 1
    p("s_waitcnt vmcnt(0)")
    p("s_barrier")
    stamp_out(p, 2, 5, rAct, 16)
    p(f"""s_cmp_lg_u32 s{sW}, 0
    s_cbranch_scc1 L_c_end
    s_lshl_b32 s4, s{sPair}, 7
    s_add_u32 s4, s4, {FLAG_BASE:#x}
    v_mov_b32 v2, 0
    v_mov_b32 v3, 1
    s_mov_b64 exec, 1
    buffer_store_dword v3, v2, s[{rAct}:{rAct+3}], s4 offen sc1
    s_endpgm""")
    p("L_c_s:")
    p(f"""s_cmp_lg_u32 s{sW}, 0
    s_cbranch_scc1 L_c_wait
    s_lshl_b32 s4, s{sPair}, 7
    s_add_u32 s4, s4, {FLAG_BASE:#x}
    v_mov_b32 v2, 0
    s_mov_b32 s6, 0x400000
    L_c_poll:
    buffer_load_dword v3, v2, s[{rAct}:{rAct+3}], s4 offen sc1
    s_waitcnt vmcnt(0)
    v_readfirstlane_b32 s5, v3
    s_nop 1
    s_cmp_eq_u32 s5, 1
    s_cbranch_scc1 L_c_wait
    s_sub_u32 s6, s6, 1
    s_cmp_lg_u32 s6, 0
    s_cbranch_scc1 L_c_poll
    L_c_wait:
    s_barrier""")
    stamp(p, 3)
    p(f"v_lshlrev_b32 v2, 4, v{vLane}")
    GR = 16
    for k in range(8):
        if k == 4: p(f"s_add_u32 s{sG}, s{sG}, 4096")
        p(VM(f"g{k}", f"buffer_load_dwordx4 {v(GR + 4 * k, 4)}, v2, s[{rAct}:{rAct+3}], s{sG} offen offset:{(k % 4)*1024} sc1"))
    k = 0
    for rb in range(4):
        p(f"s_mov_b32 s4, {rb * 16 * 2048}")
        for np_ in range(2):
            b = 48 + (k % 2) * 16
            for e in range(8): p(f"v_accvgpr_read_b32 v{b+e}, a{acc(2*np_ + e // 4, rb) + e % 4}")
            for e in range(4): p(f"v_cvt_pk_bf16_f32 v{b+8+e}, v{b+2*e}, v{b+2*e+1}")
            p(WV(f"g{k}"))
            for e in range(4):
                gr = GR + 4 * k + e
                xr = XR + ((2 * np_ + e // 2) * 4 + rb) * 2 + e % 2
                p(f"v_lshlrev_b32 v{b+2*e}, 16, v{b+8+e}")
                p(f"v_and_b32 v{b+2*e+1}, 0xffff0000, v{b+8+e}")
                p(f"v_lshlrev_b32 v{b+12}, 16, v{gr}")
                p(f"v_and_b32 v{b+13}, 0xffff0000, v{gr}")
                p(f"v_mul_f32 v{b+2*e}, v{b+2*e}, v{b+12}")
                p(f"v_mul_f32 v{b+2*e+1}, v{b+2*e+1}, v{b+13}")
                p(f"v_cvt_pk_bf16_f32 v{b+8+e}, v{b+2*e}, v{b+2*e+1}")
                p(f"v_lshlrev_b32 v{b+2*e}, 16, v{b+8+e}")
                p(f"v_and_b32 v{b+2*e+1}, 0xffff0000, v{b+8+e}")
                p(f"v_lshlrev_b32 v{b+12}, 16, v{xr}")
                p(f"v_and_b32 v{b+13}, 0xffff0000, v{xr}")
                p(f"v_add_f32 v{b+2*e}, v{b+2*e}, v{b+12}")
                p(f"v_add_f32 v{b+2*e+1}, v{b+2*e+1}, v{b+13}")
                p(f"v_cvt_pk_bf16_f32 v{b+8+e}, v{b+2*e}, v{b+2*e+1}")
            for hh in range(2):
                p(VM("o", f"buffer_store_dwordx2 {v(b+8+2*hh,2)}, v{vXo}, s[{rOut}:{rOut+3}], s4 offen offset:{(2*np_+hh)*32}"))
            k += 1
    stamp_out(p, 2, 5, rAct, 16)
    p("L_c_end:")
    p("s_endpgm")
    return p, desc("out_kernel", 192, 102, 128)

def main(fn, opt=()):
    global PROF
    PROF = "prof" in opt
    pl, dl = gen_ln()
    pa, da, ea = gen_attn(opt)
    pc, dc = gen_out(opt)
    errs = check(pl.trace, "ln") + ea + check(pc.trace, "out")
    for e in errs[:40]: print("HAZARD", e)
    hdr = open("cdna_kernels/" + KN + ".s.ref").read().split("; Override")[0]
    hdr += "; @launch kernel=ln_kernel grid=(256,1,1) block=(512,1,1) lds=0\n"
    hdr += "; @launch kernel=attn_kernel grid=(256,1,1) block=(256,1,1) lds=131072\n"
    hdr += "; @launch kernel=out_kernel grid=(256,1,1) block=(256,1,1) lds=131072\n"
    hdr += '.amdgcn_target "amdgcn-amd-amdhsa--gfx950"\n.text\n'
    s = hdr + pl.text() + pa.text() + pc.text() + '.section .rodata,"a"\n' + "".join(".p2align 6\n" + d for d in (dl, da, dc))
    open(fn, "w").write(s)
    print(f"wrote {fn}: {len(s)} bytes, hazards: {len(errs)}")

if __name__ == "__main__":
    main(sys.argv[1] if len(sys.argv) > 1 else "k.s", sys.argv[2:])
```

```python
import sys, struct
from fw import *

KN = "recurrent_scan__mha_block_cached__dense_activation_relu__prompt"
XN_BASE = 0x0
H_BASE = 0x400000
O_BASE = 0x1200000
G_BASE = 0x2200000
FLAG_BASE = 0x2600000
WS_BYTES = 0x10000000
def f32(x): return struct.unpack("<I", struct.pack("<f", x))[0]
QSCALE = f32(128 ** -0.5 * 1.4426950408889634)
LOG2E = f32(1.4426950408889634)

def v(b, n=1): return f"v{b}" if n == 1 else f"v[{b}:{b+n-1}]"
def a_(b, n=1): return f"a{b}" if n == 1 else f"a[{b}:{b+n-1}]"

def begin(p, name):
    p.raw(f".globl {name}"); p.raw(".p2align 8"); p.raw(f".type {name},@function"); p.raw(f"{name}:")
def desc(name, vgpr, sgpr, accum):
    return f""".amdhsa_kernel {name}
  .amdhsa_next_free_vgpr {vgpr}
  .amdhsa_next_free_sgpr {sgpr}
  .amdhsa_accum_offset {accum}
  .amdhsa_group_segment_fixed_size 0
  .amdhsa_kernarg_size 88
  .amdhsa_user_sgpr_count 2
  .amdhsa_user_sgpr_kernarg_segment_ptr 1
  .amdhsa_system_sgpr_workgroup_id_x 1
  .amdhsa_float_denorm_mode_32 3
.end_amdhsa_kernel
"""
def srd(p, d, b, nbytes, off_sgpr=None):
    if off_sgpr is None:
        p(f"s_mov_b32 s{d}, s{b}")
        p(f"s_and_b32 s{d+1}, s{b+1}, 0xffff")
        p(f"s_mov_b32 s{d+2}, {nbytes:#x}")
    else:
        p(f"s_add_u32 s{d}, s{b}, s{off_sgpr}")
        p(f"s_addc_u32 s{d+1}, s{b+1}, 0")
        p(f"s_and_b32 s{d+1}, s{d+1}, 0xffff")
        p(f"s_sub_u32 s{d+2}, {nbytes:#x}, s{off_sgpr}")
    p(f"s_mov_b32 s{d+3}, 0x20000")

PROF_BASE = 0x2700000
PROF = False
def stamp(p, i):
    if PROF:
        p(f"s_memrealtime s[{70+2*i}:{71+2*i}]"); p(f"s_memtime s[94:95]"); p("s_waitcnt lgkmcnt(0)"); p(f"s_mov_b32 s{71+2*i}, s94")
def tr_a(): return ["s_memrealtime s[96:97]", "s_memtime s[98:99]"] if PROF else []
def tr_b(va, cnt, add, vl, vt):
    return [f"s_add_u32 s93, s{cnt}, {add}", f"v_cmp_eq_u32 vcc, s93, v{vl}", f"v_mov_b32 v{vt}, s96", "s_nop 0", f"v_cndmask_b32 v{va}, v{va}, v{vt}, vcc",
            f"v_mov_b32 v{vt}, s98", f"v_cndmask_b32 v{va+1}, v{va+1}, v{vt}, vcc"] if PROF else []
def tr_out(p, kidx, srd, va, vt):
    if PROF:
        p(f"s_lshl_b32 s92, s2, 11"); p(f"s_add_u32 s92, s92, {PROF_BASE + 0x100000 + kidx * 0x80000:#x}")
        p(f"v_lshlrev_b32 v{vt}, 3, v0")
        p(f"buffer_store_dwordx2 v[{va}:{va+1}], v{vt}, s[{srd}:{srd+3}], s92 offen")
def stamp_out(p, kidx, n, srd, vt):
    if PROF:
        p("s_waitcnt vmcnt(0)"); stamp(p, n - 1)
        p(f"v_cmp_eq_u32 vcc, 0, v0"); p("s_nop 1"); p("s_and_saveexec_b64 s[94:95], vcc")
        lab = p.newlabel(f"L_prof{kidx}"); p(f"s_cbranch_execz {lab}")
        p(f"s_lshl_b32 s92, s2, 6"); p(f"s_add_u32 s92, s92, {PROF_BASE + kidx * 0x8000:#x}")
        p(f"v_mov_b32 v{vt+1}, 0")
        for i in range(n):
            p(f"v_mov_b32 v{vt}, s{70+2*i}")
            p(f"buffer_store_dword v{vt}, v{vt+1}, s[{srd}:{srd+3}], s92 offen offset:{4*i}")
            p(f"v_mov_b32 v{vt+2}, s{71+2*i}")
            p(f"buffer_store_dword v{vt+2}, v{vt+1}, s[{srd}:{srd+3}], s92 offen offset:{32+4*i}")
        p(f"{lab}:"); p("s_mov_b64 exec, s[94:95]")

def wave_sum(p, r):
    for sh in (1, 2, 4, 8):
        p("s_nop 1"); p(f"v_add_f32_dpp v{r}, v{r}, v{r} row_shr:{sh} row_mask:0xf bank_mask:0xf bound_ctrl:0")
    p("s_nop 1"); p(f"v_add_f32_dpp v{r}, v{r}, v{r} row_bcast:15 row_mask:0xa bank_mask:0xf")
    p("s_nop 1"); p(f"v_add_f32_dpp v{r}, v{r}, v{r} row_bcast:31 row_mask:0xc bank_mask:0xf")

def gen_ln(opt):
    p = Prog(); begin(p, "ln_kernel")
    p.c("LayerNorm (no affine), one row per wave; writes xn in MFMA-fragment order; zeroes the hand-off flags")
    p("""s_cmp_ge_u32 s2, 256
    s_cbranch_scc1 L_ln_end""")
    stamp(p, 0)
    p("""s_load_dwordx2 s[4:5], s[0:1], 0
    s_load_dwordx2 s[6:7], s[0:1], 80
    s_load_dwordx2 s[22:23], s[0:1], 24
    s_load_dwordx2 s[24:25], s[0:1], 48
    v_lshrrev_b32 v1, 6, v0
    v_and_b32 v2, 63, v0
    s_lshl_b32 s3, s2, 3
    v_add_u32 v3, s3, v1
    v_lshlrev_b32 v12, 11, v3
    v_lshrrev_b32 v13, 2, v2
    v_and_b32 v14, 3, v2
    v_lshl_add_u32 v12, v13, 6, v12
    v_lshl_add_u32 v12, v14, 3, v12
    s_waitcnt lgkmcnt(0)""")
    srd(p, 8, 4, 2048 * 1024 * 2)
    srd(p, 12, 6, WS_BYTES)
    p(VM("x", "buffer_load_dwordx2 v[4:5], v12, s[8:11], 0 offen"))
    p(VM("x", "buffer_load_dwordx2 v[6:7], v12, s[8:11], 0 offen offset:32"))
    p(VM("x", "buffer_load_dwordx2 v[8:9], v12, s[8:11], 0 offen offset:1024"))
    p(VM("x", "buffer_load_dwordx2 v[10:11], v12, s[8:11], 0 offen offset:1056"))
    if "lnpf" in opt:
        p.c("touch one 4 KB piece of Wq and of W1 per wave (one dword per 64 B) so the next launch finds them in the memory-side cache")
        srd(p, 28, 22, 1024 * 4096 * 2); srd(p, 32, 24, 1024 * 3584 * 2)
        sh = 7 if "lnpf128" in opt else 6
        p(f"""v_lshlrev_b32 v36, 12, v3
        v_lshl_add_u32 v36, v2, {sh}, v36""")
        if sh == 7: p("v_cmp_gt_u32 vcc, 32, v2"); p("v_mov_b32 v39, 0x40000000"); p("s_nop 0"); p("v_cndmask_b32 v36, v39, v36, vcc")
        p(VM("pf", "buffer_load_dword v37, v36, s[28:31], 0 offen"))
        p(VM("pf", "buffer_load_dword v38, v36, s[32:35], 0 offen"))
    p.c("output offset: t*524288 + kstep*16384 + qb16*1024 + g*256 + (row%16)*16")
    p("""v_lshrrev_b32 v15, 8, v3
    v_lshlrev_b32 v15, 19, v15
    v_lshl_add_u32 v15, v13, 14, v15
    v_bfe_u32 v32, v3, 4, 4
    v_lshl_add_u32 v15, v32, 10, v15
    v_lshl_add_u32 v15, v14, 8, v15
    v_and_b32 v32, 15, v3
    v_lshl_add_u32 v15, v32, 4, v15
    s_mov_b32 s16, 0x40000""")
    p(WV("x"))
    for i in range(8):
        p(f"v_lshlrev_b32 v{16+2*i}, 16, v{4+i}")
        p(f"v_and_b32 v{17+2*i}, 0xffff0000, v{4+i}")
    p("v_add_f32 v32, v16, v17")
    for i in range(18, 32): p(f"v_add_f32 v32, v32, v{i}")
    wave_sum(p, 32)
    p("""s_nop 0
    v_readlane_b32 s20, v32, 63
    s_nop 1
    v_mov_b32 v33, s20
    v_mul_f32 v33, 0x3a800000, v33""")
    p("v_sub_f32 v34, v16, v33"); p("v_mul_f32 v32, v34, v34")
    for i in range(17, 32):
        p(f"v_sub_f32 v34, v{i}, v33"); p("v_fmac_f32 v32, v34, v34")
    wave_sum(p, 32)
    p("""s_nop 0
    v_readlane_b32 s20, v32, 63
    s_nop 1
    v_mov_b32 v34, s20
    v_mul_f32 v34, 0x3a800000, v34
    v_cvt_pk_bf16_f32 v33, v33, v34
    v_and_b32 v34, 0xffff0000, v33
    v_lshlrev_b32 v33, 16, v33""")
    p(f"v_add_f32 v34, {f32(1e-5):#x}, v34")
    p("""v_cvt_pk_bf16_f32 v34, v34, v34
    v_lshlrev_b32 v34, 16, v34
    v_sqrt_f32 v34, v34
    s_nop 0
    v_cvt_pk_bf16_f32 v34, v34, v34
    v_lshlrev_b32 v34, 16, v34
    v_rcp_f32 v34, v34""")
    for i in range(8):
        p(f"v_sub_f32 v{16+2*i}, v{16+2*i}, v33")
        p(f"v_sub_f32 v{17+2*i}, v{17+2*i}, v33")
        p(f"v_cvt_pk_bf16_f32 v35, v{16+2*i}, v{17+2*i}")
        p(f"v_lshlrev_b32 v{16+2*i}, 16, v35")
        p(f"v_and_b32 v{17+2*i}, 0xffff0000, v35")
        p(f"v_mul_f32 v{16+2*i}, v{16+2*i}, v34")
        p(f"v_mul_f32 v{17+2*i}, v{17+2*i}, v34")
        p(f"v_cvt_pk_bf16_f32 v{4+i}, v{16+2*i}, v{17+2*i}")
    p("buffer_store_dwordx4 v[4:7], v15, s[12:15], 0 offen")
    p("buffer_store_dwordx4 v[8:11], v15, s[12:15], s16 offen")
    stamp_out(p, 0, 2, 12, 16)
    p("L_ln_end:")
    p("s_endpgm")
    return p, desc("ln_kernel", 40, 96, 40)

M16 = "v_mfma_f32_16x16x32_bf16"
M32 = "v_mfma_f32_32x32x16_bf16"
def pol(opt, key):
    for o in opt:
        if o.startswith(key + "="): return " " + o.split("=")[1].replace("+", " ")
    return ""
def gen_attn(opt):
    p = Prog(); begin(p, "attn_kernel")
    vX = 1; vWd = [2, 3, 4, 5]; vLane = 6; vTmp = 7
    vT = list(range(8, 16)); WF = 16; XF = 32
    vK = list(range(100, 108)); vV = list(range(108, 112)); vKd = [112, 113]; vVd = 114; vSt = 115; vPf = 115
    ET = 116; vL = [124, 125]; vLu = [[126, 127], [18, 19]]
    def S(par, q): return 128 + 32 * par + 16 * q
    def P(par, t, q): return 192 + 16 * par + 8 * t + 4 * q
    def NM(q): return 224 + 16 * q
    def accQ(d, qb): return 128 + (d * 4 + qb) * 4
    def accH(i, qb): return (i * 4 + qb) * 4
    def O(db, q): return (db * 2 + q) * 16
    def QF(q, s): return 32 + (q * 8 + s) * 4
    def KF(s): return 192 + 4 * s
    def VF(f): return 224 + 4 * f
    sW = 3; rXN = 8; rWq = 12; rW1 = 16; rK = 20; rV = 24; rWS = 28
    sX = 36; sWq = 37; sW1 = 38; sCnt = 39; sKV = 40; sM1 = 41; sMK = 42; sMV = 43; sThr = 44; sH = 45; sT = 46
    sHo = 47; sHs = 48; sOo = 49; sVo = 50; sSite = 51; sPo = 66; sP2 = 67; sKK = 32; sJ = 33; sRo = 34; sRx = 35; sXb = 68; sFill = 69
    PH1 = 65536; VRING = 32768

    p.c("fused: [Q | relu(H)] = xn @ [Wq_h | W1 slice]  then flash attention for (head h, 256 query rows)")
    p("""s_cmp_ge_u32 s2, 256
    s_cbranch_scc1 L_a_end""")
    stamp(p, 0)
    p("""s_load_dwordx4 s[52:55], s[0:1], 8
    s_load_dwordx2 s[56:57], s[0:1], 24
    s_load_dwordx2 s[58:59], s[0:1], 48
    s_load_dwordx2 s[60:61], s[0:1], 80
    s_load_dwordx2 s[62:63], s[0:1], 32
    s_load_dwordx2 s[64:65], s[0:1], 56
    v_lshrrev_b32 v7, 6, v0
    v_and_b32 v6, 63, v0
    s_and_b32 s4, s2, 7
    s_lshr_b32 s5, s2, 3
    v_readfirstlane_b32 s3, v7
    s_lshl_b32 s45, s4, 2
    s_and_b32 s4, s5, 3
    s_add_u32 s45, s45, s4
    s_lshr_b32 s46, s5, 2""")
    p(f"s_lshl_b32 s4, s{sW}, 12")
    p(f"v_lshlrev_b32 v{vX}, 4, v{vLane}")
    p(f"v_mov_b32 v{vSt}, v{vX}")
    p(f"v_add_u32 v{vX}, s4, v{vX}")
    p(f"s_lshl_b32 s{sX}, s{sT}, 19")
    p(f"""v_lshrrev_b32 v96, 4, v{vLane}
    v_bfe_u32 v97, v{vLane}, 1, 3
    v_and_b32 v98, 1, v{vLane}
    s_lshl_b32 s4, s{sW}, 3
    s_and_b32 s5, s{sH}, 1
    s_movk_i32 s6, 7168""")
    for i in range(2):
        p(f"""v_add_u32 v99, {4*i}, v96
        v_xor_b32 v16, v97, v99
        v_add_u32 v99, s4, v99
        v_lshlrev_b32 v17, 13, v99
        v_lshl_add_u32 v17, v16, 5, v17
        v_lshl_add_u32 v{vWd[i]}, v98, 4, v17
        v_add_u32 v18, s5, v16
        v_cmp_eq_u32 vcc, 7, v18
        v_mul_lo_u32 v17, v99, s6
        s_nop 0
        v_cndmask_b32 v18, v18, 0, vcc
        v_cmp_eq_u32 vcc, 7, v16
        v_lshl_add_u32 v17, v18, 5, v17
        v_lshl_add_u32 v17, v98, 4, v17
        v_mov_b32 v18, 0x40000000
        v_cndmask_b32 v{vWd[2+i]}, v17, v18, vcc""")
    p(f"""v_lshrrev_b32 v96, 2, v{vLane}
    v_and_b32 v97, 3, v{vLane}
    v_and_b32 v98, 7, v96
    v_lshlrev_b32 v99, 8, v96
    v_lshl_add_u32 v99, v98, 5, v99
    v_lshl_add_u32 v99, v97, 3, v99
    v_add_u32 v99, {PH1:#x}, v99""")
    for u in range(8): p(f"v_xor_b32 v{vT[u]}, {u*32}, v99")
    p(f"""v_and_b32 v96, 31, v{vLane}
    v_lshrrev_b32 v97, 5, v{vLane}
    v_and_b32 v98, 15, v{vLane}
    v_xor_b32 v97, v97, v98
    v_lshlrev_b32 v99, 8, v96
    v_lshl_add_u32 v99, v97, 4, v99""")
    for s in range(8): p(f"v_xor_b32 v{vK[s]}, {s*32}, v99")
    p(f"""v_lshrrev_b32 v96, 5, v{vLane}
    v_bfe_u32 v97, v{vLane}, 2, 2
    v_lshl_add_u32 v96, v96, 2, v97
    v_lshlrev_b32 v99, 8, v96
    v_lshl_add_u32 v99, v97, 6, v99
    v_bfe_u32 v96, v{vLane}, 4, 1
    v_lshl_add_u32 v99, v96, 5, v99
    v_and_b32 v96, 3, v{vLane}
    v_lshl_add_u32 v99, v96, 3, v99
    v_add_u32 v99, {VRING:#x}, v99""")
    for db in range(4): p(f"v_xor_b32 v{vV[db]}, {db*64}, v99")
    p(f"""v_lshrrev_b32 v96, 4, v{vLane}
    v_and_b32 v97, 15, v{vLane}
    s_lshl_b32 s4, s{sW}, 3
    v_add_u32 v96, s4, v96""")
    for i in range(2):
        p(f"""v_add_u32 v98, {4*i}, v96
        v_and_b32 v98, 15, v98
        v_xor_b32 v98, v98, v97
        v_lshlrev_b32 v99, 8, v96
        v_lshl_add_u32 v{vKd[i]}, v98, 4, v99""")
    p(f"""v_lshrrev_b32 v98, 4, v{vLane}
    v_bfe_u32 v97, v{vLane}, 2, 2
    v_xor_b32 v98, v98, v97
    v_lshlrev_b32 v99, 8, v96
    v_lshl_add_u32 v99, v98, 6, v99
    v_and_b32 v97, 3, v{vLane}
    v_lshl_add_u32 v{vVd}, v97, 4, v99""")
    p(f"""s_lshl_b32 s{sMK}, s{sW}, 11
    s_add_u32 s{sMV}, s{sMK}, {VRING:#x}
    s_add_u32 s{sM1}, s{sMK}, {PH1:#x}
    s_mov_b32 s{sWq}, 0
    s_mov_b32 s{sW1}, 0
    s_mov_b32 s{sKV}, 0
    s_mov_b32 s{sThr}, 0x45800000""")
    p(f"""s_lshl_b32 s4, s{sT}, 1
    s_lshr_b32 s5, s{sW}, 1
    s_add_u32 s4, s4, s5
    s_and_b32 s5, s{sW}, 1
    s_lshl_b32 s5, s5, 12
    s_mul_i32 s6, s{sH}, 7
    s_add_u32 s6, s6, 1
    s_lshr_b32 s6, s6, 1
    s_mul_i32 s7, s4, 112
    s_add_u32 s7, s7, s6
    s_lshl_b32 s7, s7, 13
    s_add_u32 s7, s7, s5
    s_add_u32 s{sHo}, s7, {H_BASE:#x}
    s_and_b32 s6, s{sH}, 1
    s_cmp_eq_u32 s6, 0
    s_mov_b32 s6, {3*8192:#x}
    s_cselect_b32 s6, s6, {(-8192 + 8) & 0xffffffff:#x}
    s_add_u32 s{sHs}, s{sHo}, s6
    s_lshl_b32 s7, s4, 7
    s_lshl_b32 s6, s{sH}, 2
    s_add_u32 s7, s7, s6
    s_lshl_b32 s7, s7, 13
    s_add_u32 s7, s7, s5
    s_add_u32 s{sOo}, s7, {O_BASE:#x}""")

    p(f"""s_mov_b32 s{sXb}, s{sX}
    s_bfe_u32 s4, s2, 0x20003
    s_lshl_b32 s4, s4, 1
    s_add_u32 s{sRo}, s4, s{sT}
    s_and_b32 s4, s2, 3
    s_lshl_b32 s{sRx}, s4, 3
    s_mov_b32 s{sJ}, -1""")
    if "norot1" in opt: p(f"s_mov_b32 s{sRo}, 0")
    if "norotx" in opt: p(f"s_mov_b32 s{sRx}, 0")
    p("s_waitcnt lgkmcnt(0)")
    srd(p, rXN, 60, WS_BYTES)
    p(f"s_lshl_b32 s4, s{sH}, 8"); srd(p, rWq, 56, 1024 * 4096 * 2, 4)
    p(f"s_mul_i32 s4, s{sH}, 224"); srd(p, rW1, 58, 1024 * 3584 * 2, 4)
    q_ = Prog()
    srd(q_, rWS, 60, WS_BYTES)
    q_(f"s_lshl_b32 s4, s{sH}, 19"); srd(q_, rK, 52, 32 * 2048 * 256, 4); srd(q_, rV, 54, 32 * 2048 * 256, 4)
    late_setup = q_.trace
    def x_load(j, b):
        return VM(f"x{j}", f"buffer_load_dwordx4 {v(XF + (j % 4) * 16 + 4 * b, 4)}, v{vX}, s[{rXN}:{rXN+3}], s{sX} offen offset:{b*1024}" + pol(opt, "x1"))
    def w_m0(j, i):
        return f"s_add_u32 m0, s{sM1}, {(j % 4) * 16384 + (i >> 1) * 8192 + (i & 1) * 1024}"
    def w_dma(j, i):
        r, so = (rWq, sWq) if i < 2 else (rW1, sW1)
        return VM(f"w{j}", f"buffer_load_dwordx4 v{vWd[i]}, s[{r}:{r+3}], s{so} offen" + pol(opt, "w1") + " lds")
    def t_read(F, half):
        j, n = divmod(F, 15)
        part, u = divmod(n, 8)
        off = (j % 4) * 16384 + part * 8192 + half * 4096
        return DS(f"wf{F}", f"ds_read_b64_tr_b16 {v(WF + (F % 4) * 4 + 2 * half, 2)}, v{vT[u]} offset:{off}")
    def k_m0(u): return f"s_add_u32 m0, s{sMK}, {(u % 4) * 8192}"
    def v_m0(u): return f"s_add_u32 m0, s{sMV}, {(u % 4) * 8192}"
    def k_dma(u, i, so): return VM(f"k{u}", f"buffer_load_dwordx4 v{vKd[i]}, s[{rK}:{rK+3}], s{so} offen offset:{i*1024}" + pol(opt, "kv") + " lds")
    def v_dma(u, i, so): return VM(f"v{u}", f"buffer_load_dwordx4 v{vVd}, s[{rV}:{rV+3}], s{so} offen offset:{i*1024}" + pol(opt, "kv") + " lds")

    w_off = [f"s_lshl_b32 s{sWq}, s{sKK}, 18", f"s_mul_i32 s{sW1}, s{sKK}, {32*7168}"]
    kk_next = [f"s_add_u32 s{sJ}, s{sJ}, 1", f"s_add_u32 s4, s{sJ}, s{sRo}", "s_and_b32 s4, s4, 7", f"s_add_u32 s5, s{sJ}, s{sRx}", "s_and_b32 s5, s5, 24",
               f"s_or_b32 s{sKK}, s4, s5", f"s_lshl_b32 s{sX}, s{sKK}, 14", f"s_add_u32 s{sX}, s{sX}, s{sXb}"]
    p(kk_next)
    for j in range(3):
        for b in range(4): p(x_load(j, b))
        p(w_off); p(kk_next)
        for i in range(4 if j < 2 else 3):
            p(w_m0(j, i)); p("s_nop 0"); p(w_dma(j, i))
    srd(p, 84, 62, 4096 * 1024 * 2); srd(p, 88, 64, 3584 * 1024 * 2)
    p(f"""s_lshl_b32 s4, s2, 2
    s_add_u32 s4, s4, s{sW}
    s_lshl_b32 s{sPo}, s4, 13
    s_mul_i32 s{sP2}, s4, 7168""")
    p(late_setup)
    p(f"""s_lshl_b32 s4, s2, 14
    s_lshl_b32 s5, s{sW}, 12
    s_add_u32 s4, s4, s5
    s_add_u32 s{sFill}, s4, {G_BASE:#x}""")
    for i in range(112): p(f"v_accvgpr_write_b32 a{i}, 0")
    for i in range(128, 256): p(f"v_mov_b32 v{i}, 0")
    p(WV("w0", "x0")); p("s_barrier")
    stamp(p, 1)
    for F in range(3): p(t_read(F, 0)); p(t_read(F, 1))
    p(WL("wf0"))

    kvpre = [("k", 0), ("k", 1), ("k", 2), ("v", 0), ("k", 3), ("v", 1)]
    def ph1_step(j, loop_tail=None):
        mf = []; g = [[] for _ in range(60)]
        for n in range(15):
            F = 15 * j + n
            for qb in range(4):
                acc = v(accQ(n, qb), 4) if n < 8 else a_(accH(n - 8, qb), 4)
                mf.append(f"{M16} {acc}, {v(WF + (F % 4) * 4, 4)}, {v(XF + (j % 4) * 16 + 4 * qb, 4)}, {acc}")
            if F + 3 < 15 * 32:
                g[4*n].append(t_read(F + 3, 0)); g[4*n+1].append(t_read(F + 3, 1))
            if F + 1 < 15 * 32:
                g[4*n+3].append(WL(f"wf{F+1}"))
        if j + 2 < 32:
            g[1].insert(0, w_m0(j + 2, 3)); g[2].append(w_dma(j + 2, 3))
        if j + 3 < 32:
            for b in range(4): g[6 + 4 * b].append(x_load(j + 3, b))
            for x, gp in zip(w_off + kk_next, (20, 21, 22, 24, 25, 26, 28, 29, 30, 32)): g[gp].insert(0, x)
            for i in range(3):
                g[49 + 4 * i].insert(0, w_m0(j + 3, i)); g[50 + 4 * i].append(w_dma(j + 3, i))
        else:
            for q in range(2):
                kind, u = kvpre[(j - 29) * 2 + q]
                g0 = 6 + 16 * q
                g[g0 - 2].insert(0, f"s_mov_b32 s{sVo}, {u * 8192}")
                g[g0 - 1].insert(0, k_m0(u) if kind == "k" else v_m0(u))
                for i in range(2):
                    g[g0 + 4 * i].append(k_dma(u, i, sVo) if kind == "k" else v_dma(u, i, sVo))
        if j + 1 < 32:
            g[46].append(WV(f"w{j+1}", f"x{j+1}"))
            g[47].append("s_barrier")
        if loop_tail: g[59].extend(loop_tail)
        p.block(mf, g)
    def ph1_body(it):
        p(tr_a())
        for q in range(4):
            if q == 3: p(tr_b(98, sCnt, 32, vLane, 96))
            ph1_step(4 * it + q, [f"s_sub_u32 s{sCnt}, s{sCnt}, 1", f"s_cmp_lg_u32 s{sCnt}, 0", "s_cbranch_scc1 L_ph1"] if q == 3 else None)
    p.loop(7, ph1_body, "L_ph1", sCnt)
    if "st_a" in opt: stamp(p, 5)
    for j in range(28, 32): ph1_step(j)

    p("s_nop 7")
    stamp(p, 2)
    def k_read(u, s): return DS(f"kf{u}", f"ds_read_b128 {a_(KF(s),4)}, v{vK[s]} offset:{(u % 4) * 8192}")
    p(WV("k0", "k1")); p("s_barrier")
    for s_ in range(8): p(k_read(0, s_))
    p(f"s_mov_b32 s4, {QSCALE:#x}"); p(f"s_mov_b32 s5, {QSCALE:#x}")
    pend = []
    for q in range(2):
        for d in range(8):
            b = accQ(d, 2 * q); f = QF(q, d)
            for e in range(4): p(f"v_pk_mul_f32 {v(b+2*e,2)}, {v(b+2*e,2)}, s[4:5]")
            p(pend)
            for e in range(4): p(f"v_cvt_pk_bf16_f32 v{f+e}, v{b+2*e}, v{b+2*e+1}")
            pend = [f"v_permlane16_swap_b32 v{f}, v{f+2}", f"v_permlane16_swap_b32 v{f+1}, v{f+3}"]
    p("s_nop 1"); p(pend)
    hep = []
    k = 0
    for pr in range(4):
        if 0 < pr < 3: hep.append(f"s_add_u32 s{sHo}, s{sHo}, 8192")
        for qb in range(4):
            b = 16 + (k % 2) * 8; k += 1
            n = 8 if pr < 3 else 4
            for e in range(n): hep.append(f"v_accvgpr_read_b32 v{b+e}, a{accH(2 * pr + e // 4, qb) + e % 4}")
            for e in range(n // 2): hep.append(f"v_cvt_pk_bf16_f32 v{b+e}, v{b+2*e}, v{b+2*e+1}")
            for e in range(n // 2): hep.append(f"v_pk_max_i16 v{b+e}, v{b+e}, 0")
            if pr < 3: hep.append(VM("hst", f"buffer_store_dwordx4 {v(b,4)}, v{vSt}, s[{rWS}:{rWS+3}], s{sHo} offen offset:{qb*1024}"))
            else: hep.append(VM("hst", f"buffer_store_dwordx2 {v(b,2)}, v{vSt}, s[{rWS}:{rWS+3}], s{sHs} offen offset:{qb*1024}"))

    def v_read(u, f, half):
        t, db = divmod(f, 4)
        return DS(f"vf{u}_{t}", f"ds_read_b64_tr_b16 {a_(VF(f) + 2 * half, 2)}, v{vV[db]} offset:{(u % 4) * 8192 + t * 4096 + half * 2048}")
    def qk_mf(u, first_c0=False):
        r = []
        for s in range(8):
            for q in range(2):
                d = v(S(u % 2, q), 16)
                c = ("0" if first_c0 else v(NM(q), 16)) if s == 0 else d
                r.append(f"{M32} {d}, {a_(KF(s),4)}, {v(QF(q,s),4)}, {c}")
        return r
    def pv_mf(u):
        r = []
        for t in range(2):
            for db in range(4):
                for q in range(2):
                    r.append(f"{M32} {a_(O(db,q),16)}, {a_(VF(4*t+db),4)}, {v(P(u % 2, t, q), 4)}, {'0' if (u == 0 and t == 0) else a_(O(db,q),16)}")
        return r
    def rowmax(par, q, dst, tmp):
        s = S(par, q)
        p(f"v_max3_f32 v{dst}, v{s}, v{s+1}, v{s+2}")
        for i in range(3, 15, 2): p(f"v_max3_f32 v{dst}, v{dst}, v{s+i}, v{s+i+1}")
        p(f"v_max_f32 v{dst}, v{dst}, v{s+15}")
        p(f"v_mov_b32 v{tmp}, v{dst}")
        p("s_nop 1")
        p(f"v_permlane32_swap_b32 v{dst}, v{tmp}")
        p(f"v_max_f32 v{dst}, v{dst}, v{tmp}")

    stamp(p, 3)
    p(WL("kf0"))
    mf = qk_mf(0, True); g = [[] for _ in range(16)]
    for s in range(8): g[2 * s + 1].append(k_read(1, s))
    for i in range(16):
        n = 5 if i % 2 else 6
        g[i] += hep[:n]; hep = hep[n:]
    p.block(mf, g)
    p(hep)
    for i in range(4): p(f"v_mov_b32 v{ET+i}, -1")
    for i in range(4): p(VM("fill", f"buffer_store_dwordx4 {v(ET,4)}, v{vSt}, s[{rWS}:{rWS+3}], s{sFill} offen offset:{i*1024}"))
    p("s_nop 1")
    for q in range(2):
        rowmax(0, q, ET, ET + 1)
        p(f"v_sub_f32 v{NM(q)}, 0, v{ET}"); p(f"v_sub_f32 v{NM(q)+1}, 0, v{ET}")
        for i in range(0, 16, 2): p(f"v_pk_add_f32 {v(S(0,q)+i,2)}, {v(S(0,q)+i,2)}, {v(NM(q),2)}")
        for i in range(2, 16, 2): p(f"v_pk_mov_b32 {v(NM(q)+i,2)}, {v(NM(q),2)}, {v(NM(q),2)}")
        p(f"v_mov_b32 v{vL[q]}, 0")
    p(f"s_mov_b32 s{sKV}, {4*8192}")
    p(f"s_mov_b32 s{sVo}, {2*8192}")
    p(WL("kf1"))

    rare_sites = []
    def sm_items(u):
        par = u % 2
        it = []
        order = [(q, 8 * t + r) for t in range(2) for q in range(2) for r in range(8)]
        seen = [0, 0]; prev = [None, None]
        for e, (q, r) in enumerate(order):
            tmp = ET + e % 8; eg = e - EARLY
            it.append((eg, 1, f"v_exp_f32 v{tmp}, v{S(par,q)+r}"))
            ag = eg + 1
            if seen[q] == 0: prev[q] = tmp
            elif seen[q] == 1: it.append((ag, 2, f"v_add_f32 v{vLu[par][q]}, v{prev[q]}, v{tmp}"))
            else: it.append((ag, 2, f"v_add_f32 v{vLu[par][q]}, v{vLu[par][q]}, v{tmp}"))
            seen[q] += 1
            if r % 2 == 1:
                it.append((ag, 3, f"v_cvt_pk_bf16_f32 v{P(par, r // 8, q) + (r % 8) // 2}, v{ET + (e-1) % 8}, v{tmp}"))
        return sorted(it, key=lambda x: (x[0], x[1]))
    EARLY = 4
    def l_adds(u): return [f"v_add_f32 v{vL[q]}, v{vL[q]}, v{vLu[u % 2][q]}" for q in range(2)]
    def slot(u, loop_tail=None, site=None, pf=None):
        do_qk = u + 1 < 64; do_pv = u >= 1
        mq = qk_mf(u + 1) if do_qk else [None] * 16
        mp = pv_mf(u - 1) if do_pv else [None] * 16
        mf = mq + mp
        sal = [[] for _ in range(32)]; mem = [[] for _ in range(32)]; val = [[] for _ in range(32)]
        if do_pv:
            for i, gp in enumerate((0, 2, 3, 4, 6, 7, 8, 10, 11, 12)): mem[gp].append(v_read(u - 1, 3 + i // 2, i % 2))
            sal[15].append(WL(f"vf{u-1}_0")); sal[23].append(WL(f"vf{u-1}_1"))
            val[1] += l_adds(u - 1)
        if u + 4 < 64:
            sal[3].append(k_m0(u + 4))
            mem[5].append(k_dma(u + 4, 0, sKV)); mem[9].append(k_dma(u + 4, 1, sKV))
            sal[10].append(f"s_add_u32 s{sKV}, s{sKV}, 8192")
        if u + 2 < 64:
            sal[16].append(v_m0(u + 2))
            mem[17].append(v_dma(u + 2, 0, sVo)); mem[21].append(v_dma(u + 2, 1, sVo))
            sal[22].append(f"s_add_u32 s{sVo}, s{sVo}, 8192")
        if pf == 0:
            mem[25].append(VM("pf", f"buffer_load_dword v97, v{vPf}, s[84:87], s{sPo} offen")); sal[26].append(f"s_add_u32 s{sPo}, s{sPo}, 640")
        if pf == 2:
            mem[25].append(VM("pf", f"buffer_load_dword v97, v{vPf}, s[88:91], s{sP2} offen")); sal[26].append(f"s_add_u32 s{sP2}, s{sP2}, 512")
        tags = [f"v{u}"] + ([f"k{u+2}"] if u + 2 < 64 else [])
        sal[12].append(WV(*tags))
        sal[13].append("s_barrier")
        if u + 2 < 64:
            for s, gp in enumerate((14, 15, 16, 18, 19, 20, 22, 23)): mem[gp].append(k_read(u + 2, s))
            sal[31].append(WL(f"kf{u+2}"))
        for i, gp in enumerate((24, 26, 27, 28, 30, 31)): mem[gp].append(v_read(u, i // 2, i % 2))
        for gp, pri, txt in sm_items(u):
            if gp >= 0: val[gp].insert(len(val[gp]) - (2 if gp == 1 and do_pv else 0), txt)
        if do_qk:
            for gp, pri, txt in sm_items(u + 1):
                if gp < 0: val[32 + gp].insert(0 if pri == 1 else len(val[32 + gp]), txt)
        val[33 - EARLY].append(f"v_max_f32 v{vTmp}, v{vLu[u % 2][0]}, v{vLu[u % 2][1]}")
        val[33 - EARLY].append(f"v_cmp_nge_f32 vcc, s{sThr}, v{vTmp}")
        lab = site if site else f"{u}"
        post = [f"s_cbranch_vccnz L_rare_{u % 2}", f"L_back_{lab}:"]
        if (lab, u % 2, bool(loop_tail)) not in rare_sites: rare_sites.append((lab, u % 2, bool(loop_tail)))
        sal[27].append(f"s_mov_b32 s{sSite}, {rare_sites.index((lab, u % 2, bool(loop_tail)))}")
        if loop_tail:
            sal[29].append(loop_tail[0]); post.append(loop_tail[1])
        if site:
            def drop(lst, f):
                for i in range(32):
                    keep = []
                    for x in lst[i]:
                        if f(x):
                            if isinstance(x, VM): keep.append(("vm", x.tag))
                            elif isinstance(x, DS): keep.append(("ds", x.tag))
                        else: keep.append(x)
                    lst[i] = keep
            if "a_nobar" in opt: drop(sal, lambda x: x == "s_barrier")
            if "a_nodma" in opt: drop(mem, lambda x: isinstance(x, VM))
            if "a_nods" in opt: drop(mem, lambda x: isinstance(x, DS))
            if "a_nokds" in opt: drop(mem, lambda x: isinstance(x, DS) and x.tag.startswith("kf"))
            if "a_novds" in opt: drop(mem, lambda x: isinstance(x, DS) and x.tag.startswith("vf"))
            if "a_noexp" in opt: drop(val, lambda x: "v_exp" in x)
            if "a_noadd" in opt: drop(val, lambda x: "v_add" in x)
            if "a_nocvt" in opt: drop(val, lambda x: "v_cvt" in x)
            if "a_nopost" in opt: post = [x for x in post if "L_att" in x or x.endswith(":")]; val[31] = val[31][:-2]
            if "a_nowait" in opt: drop(sal, lambda x: isinstance(x, (WV, WL)))
            if "a_nosal" in opt: drop(sal, lambda x: isinstance(x, str) and x != "s_barrier" and f"s{sCnt}" not in x)
        for i in range(32):
            if mf[i]: p(mf[i])
            for x in sal[i] + mem[i] + val[i]:
                if isinstance(x, tuple): (p.vm if x[0] == "vm" else p.ds).append(x[1])
                else: p(x)
        p(post)
    if "st_c" in opt: stamp(p, 5)
    p("s_barrier")
    for gp, pri, txt in sm_items(0):
        if gp < 0: p(txt)
    slot(0); slot(1)
    if "st_d" in opt: stamp(p, 5)
    def att_body(it):
        p(tr_a())
        for q in range(4):
            if q == 3: p(tr_b(98, sCnt, 1, vLane, 96))
            slot(2 + 4 * it + q, [f"s_sub_u32 s{sCnt}, s{sCnt}, 1", "s_cbranch_scc0 L_att"] if q == 3 else None, site=f"l{q}", pf=None if "nopf" in opt else q)
    p.loop(14, att_body, "L_att", sCnt, init=13)
    if "st_b" in opt: stamp(p, 5)
    for u in range(58, 64): slot(u)
    for f in range(3, 8):
        for hf in range(2): p(v_read(63, f, hf))
    p(l_adds(63))
    mp = pv_mf(63)
    p(WL("vf63_0"))
    for i in range(16):
        if i == 8: p(WL("vf63_1"))
        p(mp[i])
    stamp(p, 4)
    for q in range(2):
        p(f"v_mov_b32 v16, v{vL[q]}")
        p("s_nop 1")
        p(f"v_permlane32_swap_b32 v{vL[q]}, v16")
        p(f"v_add_f32 v{vL[q]}, v{vL[q]}, v16")
        p(f"v_rcp_f32 v{vL[q]}, v{vL[q]}")
    p(f"""v_bfe_u32 v16, v{vLane}, 4, 1
    v_bfe_u32 v17, v{vLane}, 5, 1
    v_and_b32 v18, 15, v{vLane}
    v_lshlrev_b32 v18, 4, v18
    v_lshl_add_u32 v18, v16, 9, v18
    v_lshl_add_u32 v{vSt}, v17, 8, v18
    s_nop 4""")
    k = 0
    for db in range(4):
        if db: p(f"s_add_u32 s{sOo}, s{sOo}, 8192")
        for q in range(2):
            b = 16 + (k % 2) * 32; k += 1
            for r in range(16): p(f"v_accvgpr_read_b32 v{b+r}, a{O(db,q)+r}")
            for r in range(0, 16, 2): p(f"v_pk_mul_f32 {v(b+r,2)}, {v(b+r,2)}, {v(vL[0],2)} op_sel:[0,{q}] op_sel_hi:[1,{q}]")
            dst = {0: 0, 1: 1, 4: 2, 5: 3, 2: 4, 3: 5, 6: 6, 7: 7}
            for c in range(8): p(f"v_cvt_pk_bf16_f32 v{b+16+dst[c]}, v{b+2*c}, v{b+2*c+1}")
            p("s_nop 0")
            for c in range(4): p(f"v_permlane16_swap_b32 v{b+16+c}, v{b+20+c}")
            p(VM("ost", f"buffer_store_dwordx4 {v(b+16,4)}, v{vSt}, s[{rWS}:{rWS+3}], s{sOo} offen offset:{2*q*1024}" + ("" if "noosc1" in opt else " sc1")))
            p(VM("ost", f"buffer_store_dwordx4 {v(b+20,4)}, v{vSt}, s[{rWS}:{rWS+3}], s{sOo} offen offset:{(2*q+1)*1024}" + ("" if "noosc1" in opt else " sc1")))
    tr_out(p, 1, rWS, 98, 20)
    stamp_out(p, 1, 7, rWS, 16)
    p("L_a_end:")
    p("s_endpgm")
    main_trace = p.trace
    errs = check(main_trace, "attn")
    for par in range(2):
        has_next = True
        p.trace = []
        p.label(f"L_rare_{par}")
        p("s_nop 15")
        for q in range(2):
            rowmax(par, q, 16, 17)
            p("v_max_f32 v16, 0, v16")
            p("v_sub_f32 v17, 0, v16")
            p("v_exp_f32 v17, v17")
            for i in range(16):
                p(f"v_sub_f32 v{S(par,q)+i}, v{S(par,q)+i}, v16")
                if has_next: p(f"v_sub_f32 v{S(1-par,q)+i}, v{S(1-par,q)+i}, v16")
                p(f"v_sub_f32 v{NM(q)+i}, v{NM(q)+i}, v16")
            p(f"v_mul_f32 v{vL[q]}, v{vL[q]}, v17")
            for db in range(4):
                for r in range(0, 16, 4):
                    for e in range(4): p(f"v_accvgpr_read_b32 v{20+e}, a{O(db,q)+r+e}")
                    for e in range(4): p(f"v_mul_f32 v{20+e}, v{20+e}, v17")
                    for e in range(4): p(f"v_accvgpr_write_b32 a{O(db,q)+r+e}, v{20+e}")
            for hb in range(2):
                for i in range(8): p(f"v_exp_f32 v{24+i}, v{S(par,q)+8*hb+i}")
                p("s_nop 0")
                if hb == 0: p(f"v_add_f32 v{vLu[par][q]}, v24, v25")
                for i in range(2 if hb == 0 else 0, 8): p(f"v_add_f32 v{vLu[par][q]}, v{vLu[par][q]}, v{24+i}")
                for i in range(4): p(f"v_cvt_pk_bf16_f32 v{P(par, hb, q) + i}, v{24+2*i}, v{25+2*i}")
        for gp, pri, txt in sm_items(par + 1):
            if gp < 0: p(txt); p("s_nop 0")
        mine = [(i, x) for i, x in enumerate(rare_sites) if x[1] == par]
        for i, (lab, _, lt) in mine:
            if lt: continue
            p(f"s_cmp_eq_u32 s{sSite}, {i}"); p(f"s_cbranch_scc1 L_back_{lab}")
        lts = [x for _, x in mine if x[2]]
        if lts:
            p(f"s_cmp_eq_u32 s{sCnt}, -1"); p(f"s_branch L_back_{lts[0][0]}")
        else:
            p("s_endpgm")
        errs += check(p.trace, f"rare{par}")
    p.trace = []
    return p, desc("attn_kernel", 512, 102, 256), errs

def gen_out(opt):
    p = Prog(); begin(p, "out_kernel")
    vLane = 1; vA = [2, 3]; vT = [list(range(4, 8)), list(range(8, 12))]; vWd = [12, 13]; vAd = 14; vXo = 15
    def AF(buf, nb): return 16 + buf * 16 + nb * 4
    def BF(buf, rb): return 48 + buf * 16 + rb * 4
    XR = 80
    def acc(nb, rb): return 128 + (nb * 4 + rb) * 4
    GR = 192; vGo = 112; vOo = 113; sGl = 54; sXo = 55
    sW = 3; rAct = 8; rW = 12; rX = 16; rOut = 20
    sA = 24; sWo = 25; sCnt = 26; sM = 27; sTy = 28; sPair = 29; sG = 30; sRT = 31; sCT = 32
    sBase = 33; sK = 34; sT = 35; sTog = 52; sAn = 53
    RW = 4 if "rw16" in opt else 3
    p.c("128x128 tiles: workgroups of XCD-group 0 compute g = silu(H @ W2), group 1 compute s = O @ Wo and finish out = x + s*g")
    p("""s_cmp_ge_u32 s2, 256
    s_cbranch_scc1 L_c_end""")
    stamp(p, 0)
    p("""s_load_dwordx2 s[36:37], s[0:1], 0
    s_load_dwordx2 s[38:39], s[0:1], 32
    s_load_dwordx2 s[40:41], s[0:1], 56
    s_load_dwordx2 s[42:43], s[0:1], 64
    s_load_dwordx2 s[44:45], s[0:1], 80
    v_lshrrev_b32 v15, 6, v0
    v_and_b32 v1, 63, v0
    s_bfe_u32 s28, s2, 0x10002
    s_lshr_b32 s5, s2, 3
    v_readfirstlane_b32 s3, v15
    s_bfe_u32 s4, s2, 0x10001
    s_lshl_b32 s4, s4, 3
    s_and_b32 s6, s5, 7
    s_add_u32 s31, s4, s6
    s_and_b32 s4, s2, 1
    s_lshl_b32 s4, s4, 2
    s_lshr_b32 s6, s5, 3
    s_add_u32 s32, s4, s6
    s_lshl_b32 s29, s31, 3
    s_add_u32 s29, s29, s32""")
    if "same" in opt: p("s_mov_b32 s31, 0"); p("s_mov_b32 s32, 0")
    p(f"""s_lshr_b32 s4, s{sW}, 1
    s_lshl_b32 s4, s4, 13
    s_add_u32 s4, s4, 2048
    v_lshlrev_b32 v{vAd}, 4, v{vLane}
    v_add_u32 v{vA[0]}, s4, v{vAd}
    v_add_u32 v{vA[1]}, 0x10000, v{vA[0]}""")
    p(f"""v_lshrrev_b32 v16, 5, v{vLane}
    v_bfe_u32 v17, v{vLane}, 2, 3
    v_and_b32 v18, 3, v{vLane}
    v_lshlrev_b32 v19, 12, v16
    v_lshl_add_u32 v19, v17, 8, v19
    v_lshl_add_u32 v19, v17, 5, v19
    v_lshl_add_u32 v19, v18, 3, v19
    s_and_b32 s4, s{sW}, 1
    s_lshl_b32 s4, s4, 7
    v_xor_b32 v19, s4, v19""")
    for i in range(4):
        p(f"v_xor_b32 v{vT[0][i]}, {i*32}, v19")
        p(f"v_add_u32 v{vT[1][i]}, 0x10000, v{vT[0][i]}")
    p(f"""v_lshrrev_b32 v16, 4, v{vLane}
    v_bfe_u32 v17, v{vLane}, 1, 3
    v_and_b32 v18, 1, v{vLane}
    s_lshl_b32 s4, s{sW}, 3""")
    for i in range(2):
        p(f"""v_add_u32 v19, {4*i}, v16
        v_xor_b32 v20, v17, v19
        v_add_u32 v19, s4, v19
        v_lshlrev_b32 v19, 11, v19
        v_lshl_add_u32 v19, v20, 5, v19
        v_lshl_add_u32 v19, v18, 4, v19
        v_subrev_u32 v{vWd[i]}, {i*1024}, v19""")
    p(f"""s_lshl_b32 s4, s{sW}, 11
    v_add_u32 v{vAd}, s4, v{vAd}
    s_lshl_b32 s{sM}, s{sW}, 12""")
    p(f"""v_and_b32 v16, 15, v{vLane}
    v_lshrrev_b32 v17, 4, v{vLane}
    v_lshlrev_b32 v16, 11, v16
    v_lshl_add_u32 v16, v17, 3, v16
    s_lshl_b32 s4, s{sRT}, 18
    s_lshr_b32 s5, s{sW}, 1
    s_lshl_b32 s5, s5, 17
    s_add_u32 s4, s4, s5
    s_lshl_b32 s5, s{sCT}, 8
    s_add_u32 s4, s4, s5
    s_and_b32 s5, s{sW}, 1
    s_lshl_b32 s5, s5, 7
    s_add_u32 s4, s4, s5
    v_add_u32 v{vXo}, s4, v16
    s_waitcnt lgkmcnt(0)""")
    srd(p, rAct, 44, WS_BYTES); srd(p, rX, 36, 2048 * 2048); srd(p, rOut, 42, 2048 * 2048)
    p(f"""s_cmp_eq_u32 s{sTy}, 0
    s_cselect_b32 s46, s40, s38
    s_cselect_b32 s47, s41, s39
    s_mov_b32 s48, {3584*2048:#x}
    s_mov_b32 s49, 112
    s_mov_b32 s50, {H_BASE - 2048:#x}
    s_cselect_b32 s48, s48, {4096*2048:#x}
    s_cselect_b32 s49, s49, 128
    s_cselect_b32 s50, s50, {O_BASE - 2048:#x}
    s_cselect_b32 s{sCnt}, 12, 14
    s_mul_i32 s4, s{sRT}, s49
    s_lshl_b32 s4, s4, 13
    s_add_u32 s{sBase}, s4, s50
    s_lshl_b32 s5, s{sBase}, 3
    s_lshl_b32 s6, s{sCT}, 8
    s_sub_u32 s{sK}, s6, s5
    s_and_b32 s5, s{sCT}, 3
    s_lshl_b32 s5, s5, 1
    s_add_u32 s5, s5, s{sRT}
    s_and_b32 s5, s5, 7
    s_lshl_b32 s{sT}, s5, {13 + RW - 3}
    s_mov_b32 s{sTog}, 0
    s_add_u32 s{sA}, s{sT}, s{sBase}
    s_lshl3_add_u32 s{sWo}, s{sA}, s{sK}
    s_mov_b32 s{rW}, s46
    s_and_b32 s{rW+1}, s47, 0xffff
    s_mov_b32 s{rW+2}, s48
    s_mov_b32 s{rW+3}, 0x20000
    s_lshl_b32 s4, s{sPair}, 15
    s_lshl_b32 s5, s{sW}, 13
    s_add_u32 s4, s4, s5
    s_add_u32 s{sG}, s4, {G_BASE:#x}""")
    for i in range(8): p(f"s_add_u32 s{56+i}, s{sM}, {i * 16384}")
    def m0(j): return f"s_mov_b32 m0, s{56 + j % 8}"
    def dma(j, i):
        if i < 2: return VM(f"d{j}", f"buffer_load_dwordx4 v{vWd[i]}, s[{rW}:{rW+3}], s{sWo} offen offset:{i*1024}" + pol(opt, "cw") + " lds")
        return VM(f"d{j}", f"buffer_load_dwordx4 v{vAd}, s[{rAct}:{rAct+3}], s{(sA, sAn)[j % 2]} offen offset:{i*1024}" + pol(opt, "ca") + " lds")
    def adv(jn):
        w = []
        if jn % 8 == 0 and "norot" not in opt:
            if RW == 4: w = [f"s_add_u32 s{sBase}, s{sBase}, s{sTog}", f"s_xor_b32 s{sTog}, s{sTog}, {16 * 8192:#x}"]
            else: w = [f"s_add_u32 s{sBase}, s{sBase}, {8 * 8192:#x}"]
        d = (sA, sAn)[jn % 2]; o = (sA, sAn)[1 - jn % 2]
        if "norot" in opt: r = [f"s_add_u32 s{d}, s{o}, 8192"]
        else: r = [f"s_add_u32 s{sT}, s{sT}, 8192", f"s_and_b32 s{sT}, s{sT}, {((1 << RW) - 1) * 8192:#x}", f"s_add_u32 s{d}, s{sT}, s{sBase}"]
        return w, r + [f"s_lshl3_add_u32 s{sWo}, s{d}, s{sK}"]
    def b_read(j, i):
        hi, o = divmod((j % 8) * 16384, 65536)
        return DS(f"b{j}", f"ds_read_b128 {v(BF(j % 2, i), 4)}, v{vA[hi]} offset:{o + (i // 2) * 4096 + (i % 2) * 1024}")
    def a_read(j, i, half):
        hi, o = divmod((j % 8) * 16384, 65536)
        return DS(f"a{j}_{i}", f"ds_read_b64_tr_b16 {v(AF(j % 2, i) + 2 * half, 2)}, v{vT[hi][i]} offset:{o + half * 8192}")
    AHEAD = 6
    if "norot" in opt: p(f"s_mov_b32 s{sA}, s{sBase}"); p(f"s_lshl3_add_u32 s{sWo}, s{sA}, s{sK}")
    for j in range(AHEAD):
        p(m0(j)); p("s_nop 0")
        for i in range(4): p(dma(j, i))
        p(list(adv(j + 1)))
    p(m0(AHEAD))
    for i in range(64): p(f"v_mov_b32 v{128+i}, 0")
    p(f"""v_lshlrev_b32 v{vGo}, 4, v{vLane}
    v_bfe_u32 v16, v{vLane}, 4, 1
    v_bfe_u32 v17, v{vLane}, 5, 1
    v_lshrrev_b32 v18, 4, v{vLane}
    v_lshlrev_b32 v18, 3, v18
    v_sub_u32 v{vOo}, v{vXo}, v18
    v_lshl_add_u32 v{vOo}, v16, 5, v{vOo}
    v_lshl_add_u32 v{vOo}, v17, 4, v{vOo}
    s_cmp_eq_u32 s{sTy}, 0
    s_cselect_b32 s{sXo}, 0x40000000, 0
    s_cselect_b32 s{sGl}, 0x40000000, s{sG}""")
    p(WV("d0", "d1")); p("s_barrier")
    stamp(p, 1)
    for i in range(4): p(b_read(0, i))
    for i in range(3): p(a_read(0, i, 0)); p(a_read(0, i, 1))
    p(WL("a0_0"))
    def g_load(k): return VM("g", f"buffer_load_dwordx4 {v(GR + 4 * k, 4)}, v{vGo}, s[{rAct}:{rAct+3}], s{sGl} offen offset:{(k % 4)*1024} sc1")
    NS = 128
    def step(j, loop_tail=None):
        mf = [f"{M16} {v(acc(nb, rb), 4)}, {v(AF(j % 2, nb), 4)}, {v(BF(j % 2, rb), 4)}, {v(acc(nb, rb), 4)}" for nb in range(4) for rb in range(4)]
        sal = [[] for _ in range(16)]; g = [[] for _ in range(16)]
        g[1].append(a_read(j, 3, 0)); g[2].append(a_read(j, 3, 1))
        if j + 1 < NS:
            for i, gp in enumerate((3, 5, 6, 7)): g[gp].append(b_read(j + 1, i))
            for i, gp in enumerate((9, 10, 11, 13, 14, 15)): g[gp].append(a_read(j + 1, i // 2, i % 2))
        if j + AHEAD < NS:
            for i in range(4):
                if "nodma" in opt: p.vm.append(f"d{j + AHEAD}")
                else: g[4 * i].append(dma(j + AHEAD, i))
        elif j in (122, 123):
            for z in range(2):
                rb = 2 * (j - 122) + z
                sal[8 * z].append(f"s_add_u32 s4, s{sXo}, {rb * 16 * 2048}")
                for nb in range(4):
                    g[8 * z + 2 * nb].append(VM("x", f"buffer_load_dwordx2 {v(XR + (nb * 4 + rb) * 2, 2)}, v{vXo}, s[{rX}:{rX+3}], s4 offen offset:{nb*32}"))
        elif j in (124, 125):
            if j == 125: sal[0].append(f"s_add_u32 s{sGl}, s{sGl}, 4096")
            for k in range(4): g[4 * k].append(g_load(4 * (j - 124) + k))
        if j + 1 + AHEAD < NS:
            w, r = adv(j + 1 + AHEAD)
            for x, gp in zip(w, (1, 2)): sal[gp].append(x)
            for x, gp in zip(r, (5, 6, 9, 10)): sal[gp].append(x)
            sal[14].append(m0(j + 1 + AHEAD))
        sal[3].append(WL(f"a{j}_1")); sal[7].append(WL(f"a{j}_2")); sal[11].append(WL(f"a{j}_3"))
        post = []
        if j + 1 < NS:
            sal[15].append(WL(f"a{j+1}_0"))
            if j % 2 == 0 and j + 2 < NS:
                post.append(WV(f"d{j+2}", f"d{j+3}") if j + 3 < NS else WV(f"d{j+2}"))
                post.append("s_barrier")
        if loop_tail:
            sal[13].append(loop_tail[0]); post.append(loop_tail[1])
        g[15].extend(post)
        p.block(mf, [x + y for x, y in zip(sal, g)])
    def body(it):
        p(tr_a())
        for q in range(8):
            if q == 7: p(tr_b(114, sCnt, 0, vLane, 116))
            step(8 * it + q, [f"s_sub_u32 s{sCnt}, s{sCnt}, 1", "s_cbranch_scc0 L_c_loop"] if q == 7 else None)
    p.loop(15, body, "L_c_loop", 51)
    for j in range(120, 128): step(j)
    p("s_nop 7")
    stamp(p, 2); stamp(p, 3)
    tr_out(p, 2, rAct, 114, 116)
    p(f"s_cmp_lg_u32 s{sTy}, 0")
    p("s_cbranch_scc1 L_c_s")
    p(f"s_mov_b32 s4, {f32(-1.4426950408889634):#x}"); p("s_mov_b32 s5, s4")
    p("s_mov_b32 s6, 1.0"); p("s_mov_b32 s7, 1.0")
    k = 0
    for rb in range(4):
        for np_ in range(2):
            b = 16 + (k % 2) * 8
            src = [acc(2 * np_ + e // 2, rb) + 2 * (e % 2) for e in range(4)]
            for e in range(4): p(f"v_pk_mul_f32 {v(b+2*e,2)}, {v(src[e],2)}, s[4:5]")
            for e in range(8): p(f"v_exp_f32 v{b+e}, v{b+e}")
            for e in range(4): p(f"v_pk_add_f32 {v(b+2*e,2)}, {v(b+2*e,2)}, s[6:7]")
            for e in range(8): p(f"v_rcp_f32 v{b+e}, v{b+e}")
            for e in range(4): p(f"v_pk_mul_f32 {v(b+2*e,2)}, {v(b+2*e,2)}, {v(src[e],2)}")
            for e in range(4): p(f"v_cvt_pk_bf16_f32 v{b+e}, v{b+2*e}, v{b+2*e+1}")
            for e in range(4): p(f"v_min_u32 v{b+e}, -2, v{b+e}")
            if k == 4: p(f"s_add_u32 s{sG}, s{sG}, 4096")
            p(VM("g", f"buffer_store_dwordx4 {v(b,4)}, v{vGo}, s[{rAct}:{rAct+3}], s{sG} offen offset:{(k % 4)*1024} sc1"))
            k += 1
    stamp_out(p, 2, 5, rAct, 16)
    p("s_endpgm")
    p("L_c_s:")
    p("s_mov_b32 s6, 0x100000")
    p("L_c_chk:")
    p("s_waitcnt vmcnt(0)")
    p(f"v_max3_u32 v16, v{GR}, v{GR+1}, v{GR+2}")
    p(f"v_max3_u32 v17, v{GR+3}, v{GR+4}, v{GR+5}")
    for i in range(6, 30, 4):
        p(f"v_max3_u32 v16, v{GR+i}, v{GR+i+1}, v16"); p(f"v_max3_u32 v17, v{GR+i+2}, v{GR+i+3}, v17")
    p(f"v_max3_u32 v16, v{GR+30}, v{GR+31}, v16")
    p("v_max_u32 v16, v16, v17")
    p("v_cmp_eq_u32 vcc, -1, v16")
    p("s_cbranch_vccz L_c_go")
    p("s_sub_u32 s6, s6, 1")
    p("s_cbranch_scc1 L_c_go")
    p(f"s_mov_b32 s{sGl}, s{sG}")
    for k in range(8):
        if k == 4: p(f"s_add_u32 s{sGl}, s{sGl}, 4096")
        p(g_load(k))
    p("s_branch L_c_chk")
    p("L_c_go:")
    stamp(p, 3)
    k = 0
    for rb in range(4):
        p(f"s_mov_b32 s4, {rb * 16 * 2048}")
        for np_ in range(2):
            b = 16 + (k % 2) * 16
            for e in range(4):
                gr = GR + 4 * k + e
                xr = XR + ((2 * np_ + e // 2) * 4 + rb) * 2 + e % 2
                p(f"v_lshlrev_b32 v{b+2*e}, 16, v{gr}")
                p(f"v_and_b32 v{b+2*e+1}, 0xffff0000, v{gr}")
                p(f"v_lshlrev_b32 v{b+8+2*e}, 16, v{xr}")
                p(f"v_and_b32 v{b+8+2*e+1}, 0xffff0000, v{xr}")
            for e in range(4):
                src = acc(2 * np_ + e // 2, rb) + 2 * (e % 2)
                p(f"v_pk_fma_f32 {v(b+2*e,2)}, {v(src,2)}, {v(b+2*e,2)}, {v(b+8+2*e,2)}")
            for e in range(4): p(f"v_cvt_pk_bf16_f32 v{b+e}, v{b+2*e}, v{b+2*e+1}")
            p("s_nop 0")
            p(f"v_permlane16_swap_b32 v{b}, v{b+2}"); p(f"v_permlane16_swap_b32 v{b+1}, v{b+3}")
            p(VM("o", f"buffer_store_dwordx4 {v(b,4)}, v{vOo}, s[{rOut}:{rOut+3}], s4 offen offset:{np_*64}"))
            k += 1
    stamp_out(p, 2, 5, rAct, 16)
    p("L_c_end:")
    p("s_endpgm")
    return p, desc("out_kernel", 224, 102, 224)

def main(fn, opt=()):
    global PROF
    PROF = "prof" in opt
    pl, dl = gen_ln(opt)
    pa, da, ea = gen_attn(opt)
    pc, dc = gen_out(opt)
    errs = check(pl.trace, "ln") + ea + check(pc.trace, "out")
    for e in errs[:40]: print("HAZARD", e)
    hdr = open("cdna_kernels/" + KN + ".s.ref").read().split("; Override")[0]
    hdr += "; @launch kernel=ln_kernel grid=(256,1,1) block=(512,1,1) lds=0\n"
    hdr += "; @launch kernel=attn_kernel grid=(256,1,1) block=(256,1,1) lds=131072\n"
    hdr += "; @launch kernel=out_kernel grid=(256,1,1) block=(256,1,1) lds=131072\n"
    hdr += '.amdgcn_target "amdgcn-amd-amdhsa--gfx950"\n.text\n'
    s = hdr + pl.text() + pa.text() + pc.text() + '.section .rodata,"a"\n' + "".join(".p2align 6\n" + d for d in (dl, da, dc))
    open(fn, "w").write(s)
    print(f"wrote {fn}: {len(s)} bytes, hazards: {len(errs)}")

if __name__ == "__main__":
    main(sys.argv[1] if len(sys.argv) > 1 else "k.s", sys.argv[2:])
```

```python
import re

class VM:
    def __init__(s, tag, text): s.tag = tag; s.text = text
class DS:
    def __init__(s, tag, text): s.tag = tag; s.text = text
class NOP:
    def __init__(s, kind, tag): s.kind = kind; s.tag = tag
class WV:
    def __init__(s, *tags): s.tags = tags
class WL:
    def __init__(s, *tags): s.tags = tags

class Prog:
    def __init__(s):
        s.out = []
        s.trace = []
        s.vm = []; s.ds = []
        s.cap = None
        s.nlab = 0
    def _put(s, line, instr=True):
        if s.cap is not None: s.cap.append(line)
        else: s.out.append(line)
        if instr: s.trace.append(line.strip())
    def raw(s, line): s._put(line, False)
    def label(s, n): s._put(n + ":", False)
    def c(s, t): s._put("    ; " + t, False)
    def newlabel(s, p="L"):
        s.nlab += 1; return f"{p}_{s.nlab}"
    def _cnt(s, lst, tags, mx, what):
        idx = -1
        for t in tags:
            k = [i for i, x in enumerate(lst) if x == t]
            assert k, f"{what} wait on unknown tag {t}"
            idx = max(idx, k[-1])
        n = len(lst) - 1 - idx
        return min(n, mx)
    def __call__(s, it):
        if isinstance(it, (list, tuple)):
            for x in it: s(x)
        elif isinstance(it, NOP):
            (s.vm if it.kind == "vm" else s.ds).append(it.tag)
        elif isinstance(it, VM):
            s.vm.append(it.tag); s._put("    " + it.text)
        elif isinstance(it, DS):
            s.ds.append(it.tag); s._put("    " + it.text)
        elif isinstance(it, WV):
            n = s._cnt(s.vm, it.tags, 63, "vm"); s._put(f"    s_waitcnt vmcnt({n})")
        elif isinstance(it, WL):
            n = s._cnt(s.ds, it.tags, 15, "ds"); s._put(f"    s_waitcnt lgkmcnt({n})")
        else:
            for l in it.strip("\n").split("\n"):
                l = l.strip()
                if not l: continue
                if l.endswith(":"): s._put(l, False)
                elif l.startswith(";") or l.startswith("."): s._put("    " + l if l.startswith(";") else l, False)
                else: s._put("    " + l)
    def block(s, mf, gaps):
        for i, m in enumerate(mf):
            s(m)
            s(gaps[i])
    def loop(s, n, body, label, counter, pre_align=True, init=None):
        assert s.cap is None
        tail = [f"s_sub_u32 s{counter}, s{counter}, 1", f"s_cmp_lg_u32 s{counter}, 0", f"s_cbranch_scc1 {label}"]
        first = None
        if counter is not None: s(f"s_mov_b32 s{counter}, {n if init is None else init}")
        for it in range(n):
            s.cap = []
            body(it)
            txt = s.cap; s.cap = None
            if first is None: first = txt
            else:
                if txt != first:
                    assert len(txt) == len(first), f"loop {label} iteration {it} differs in length"
                    for i, (x, y) in enumerate(zip(first, txt)):
                        if x != y:
                            mx = re.fullmatch(r"\s*s_waitcnt (\w+)\((\d+)\)", x); my = re.fullmatch(r"\s*s_waitcnt (\w+)\((\d+)\)", y)
                            if mx and my and mx.group(1) == my.group(1):
                                if int(my.group(2)) < int(mx.group(2)): first[i] = y
                            else: raise AssertionError(f"loop {label} iteration {it} differs: {x!r} vs {y!r}")
        if pre_align: s.out.append(".p2align 6")
        s.out.append(label + ":")
        s.out.extend(first)
    def text(s): return "\n".join(s.out) + "\n"

_reg = re.compile(r"\b([vas])(\d+)\b|\b([vas])\[(\d+):(\d+)\]")
def regs(op):
    r = set()
    for m in _reg.finditer(op):
        if m.group(1): r.add((m.group(1), int(m.group(2))))
        else:
            for i in range(int(m.group(4)), int(m.group(5)) + 1): r.add((m.group(3), i))
    if re.search(r"\bvcc\b", op): r.add(("s", "vcc"))
    if re.search(r"\bm0\b", op): r.add(("s", "m0"))
    return r
TRANS = ("v_exp_f32", "v_log_f32", "v_rcp_f32", "v_rsq_f32", "v_sqrt_f32")
def decode(line):
    line = line.split(";")[0].strip()
    p = line.split(None, 1)
    op = p[0]; ops = [x.strip() for x in p[1].split(",")] if len(p) > 1 else []
    d = dict(op=op, w=set(), r=set(), kind="salu", line=line, srcc=set(), ab=set(), data=set(), passes=0, states=1)
    if op == "s_nop": d["states"] = int(ops[0], 0) + 1
    if op.startswith("v_mfma"):
        d["kind"] = "mfma"; d["w"] = regs(ops[0]); d["ab"] = regs(ops[1]) | regs(ops[2]); d["srcc"] = regs(ops[3])
        d["r"] = d["ab"] | d["srcc"]; d["passes"] = 8 if "32x32x16" in op else 4
    elif op.startswith("v_"):
        d["kind"] = "valu"
        if op.startswith("v_cmp"):
            d["w"] = regs(ops[0]); d["r"] = set().union(*[regs(x) for x in ops[1:]])
        elif "swap" in op:
            d["w"] = regs(ops[0]) | regs(ops[1]); d["r"] = set(d["w"])
        else:
            d["w"] = regs(ops[0]); d["r"] = set().union(*[regs(x) for x in ops[1:]]) if len(ops) > 1 else set()
            if op.startswith(("v_fmac", "v_mac")): d["r"] |= d["w"]
            if "_dpp" in op: d["r"] |= d["w"]
            if op.startswith("v_cndmask") and len(ops) == 3: d["r"].add(("s", "vcc"))
    elif op.startswith("ds_"):
        d["kind"] = "ds"
        if "read" in op: d["w"] = regs(ops[0]); d["r"] = regs(ops[1].split()[0])
        elif "permute" in op: d["w"] = regs(ops[0]); d["r"] = regs(ops[1]) | regs(ops[2].split()[0])
        else: d["r"] = set().union(*[regs(x.split()[0]) for x in ops])
    elif op.startswith(("buffer_", "global_")):
        d["kind"] = "vmem"
        lds = " lds" in line
        if "load" in op and not lds:
            d["w"] = regs(ops[0]); d["r"] = set().union(*[regs(x) for x in ops[1:]])
        else:
            d["r"] = set().union(*[regs(x) for x in ops])
            if "store" in op: d["data"] = regs(ops[0]) if op.startswith("buffer_") else regs(ops[1])
            if lds: d["r"].add(("s", "m0")); d["lds"] = True
    elif op.startswith("s_"):
        if op.startswith(("s_cmp", "s_cbranch", "s_branch", "s_waitcnt", "s_barrier", "s_nop", "s_endpgm", "s_setprio", "s_sleep")):
            d["r"] = set().union(*[regs(x) for x in ops]) if ops else set()
        else:
            d["w"] = regs(ops[0]) if ops else set(); d["r"] = set().union(*[regs(x) for x in ops[1:]]) if len(ops) > 1 else set()
    return d

def check(trace, name=""):
    ins = [decode(l) for l in trace]
    errs = []
    n = len(ins)
    for i, p in enumerate(ins):
        dist = 0
        for j in range(i + 1, min(n, i + 24)):
            c = ins[j]
            need = 0
            vw = {x for x in p["w"] if x[0] in "va"}
            sw = {x for x in p["w"] if x[0] == "s"}
            if p["kind"] == "valu":
                if c["kind"] == "mfma" and vw & c["r"]: need = max(need, 2)
                if c["kind"] == "valu" and p["op"].startswith(TRANS) and not c["op"].startswith(TRANS) and vw & c["r"]: need = max(need, 1)
                if c["kind"] == "valu" and ("permlane" in c["op"] or "_dpp" in c["op"]) and vw & c["r"]: need = max(need, 2)
                if c["op"].startswith(("v_readlane", "v_readfirstlane")) and vw & c["r"]: need = max(need, 1)
                if c["kind"] == "vmem" and sw & c["r"]: need = max(need, 5)
                if c["kind"] == "valu" and sw & c["r"]: need = max(need, 2)
                if c["kind"] == "salu" and sw & c["r"] and not c["op"].startswith("s_cbranch"): need = max(need, 1)
            if p["kind"] == "mfma":
                big = {4: 8, 8: 12}[p["passes"]]
                if c["kind"] == "mfma":
                    if vw & c["ab"]: need = max(need, big)
                    if vw & c["srcc"] and not (c["srcc"] == p["w"] and c["passes"] == p["passes"]): need = max(need, big - 2)
                    if vw & c["w"] and not (c["srcc"] == p["w"]) : need = max(need, big - 2)
                elif c["kind"] in ("valu", "ds", "vmem"):
                    if vw & (c["r"] | c["w"]): need = max(need, big)
                    if c["kind"] == "valu" and p["srcc"] & c["w"]: need = max(need, {4: 3, 8: 7}[p["passes"]])
            if p["kind"] == "salu" and ("s", "m0") in p["w"] and c.get("lds"): need = max(need, 1)
            if p["kind"] == "vmem" and p["data"] and len(p["data"]) >= 3 and c["w"] & p["data"]:
                need = max(need, 2 if c["kind"] == "valu" else 1)
            if need > dist:
                errs.append(f"{name}: need {need} have {dist}: [{i}] {p['line']}  ->  [{j}] {c['line']}")
            dist += c["states"]
            if dist >= 20: break
    return errs

SCCW = ("s_add", "s_sub", "s_and", "s_or", "s_xor", "s_lshl", "s_lshr", "s_bfe", "s_cmp", "s_min", "s_max", "s_not", "s_ashr", "s_nand", "s_nor", "s_xnor", "s_abs", "s_bcnt", "s_bitcmp", "s_cbranch_vcc", "s_branch")
def scc_check(trace, name=""):
    errs = []; last = None; li = -1
    for i, l in enumerate(trace):
        op = l.split()[0]
        tag = l.split("scc=")[1].split()[0] if "scc=" in l else None
        if op.startswith(("s_cselect", "s_cbranch_scc", "s_addc", "s_subb")):
            lt = last.split("scc=")[1].split()[0] if last and "scc=" in last else None
            if tag != lt: errs.append(f"{name}: scc reader [{i}] {l} sees [{li}] {last}")
            elif tag is None and not (last and (last.startswith("s_cmp") and i - li <= 6 or op.startswith(("s_addc", "s_subb")) and i - li == 1 or last.startswith("s_sub_u32") and last.split(";")[0].strip().endswith(", 1"))):
                errs.append(f"{name}: scc reader [{i}] {l} sees [{li}] {last}")
        if op.startswith(SCCW) and not (op == "s_cbranch_vccnz" and i + 1 < len(trace) and "L_att" in trace[i + 1]): last = l; li = i
    return errs
```

```python
import sys, struct
from fw import *

KN = "recurrent_scan__mha_block_cached__dense_activation_relu__prompt"
XN_BASE = 0x0
H_BASE = 0x400000
O_BASE = 0x1200000
G_BASE = 0x2200000
FLAG_BASE = 0x2600000
WS_BYTES = 0x10000000
OOR = 0x40000000
def f32(x): return struct.unpack("<I", struct.pack("<f", x))[0]
QSCALE = f32(128 ** -0.5 * 1.4426950408889634)

def v(b, n=1): return f"v{b}" if n == 1 else f"v[{b}:{b+n-1}]"
def a_(b, n=1): return f"a{b}" if n == 1 else f"a[{b}:{b+n-1}]"

def begin(p, name):
    p.raw(f".globl {name}"); p.raw(".p2align 8"); p.raw(f".type {name},@function"); p.raw(f"{name}:")
def desc(name, vgpr, sgpr, accum):
    return f""".amdhsa_kernel {name}
  .amdhsa_next_free_vgpr {vgpr}
  .amdhsa_next_free_sgpr {sgpr}
  .amdhsa_accum_offset {accum}
  .amdhsa_group_segment_fixed_size 0
  .amdhsa_kernarg_size 88
  .amdhsa_user_sgpr_count 2
  .amdhsa_user_sgpr_kernarg_segment_ptr 1
  .amdhsa_system_sgpr_workgroup_id_x 1
  .amdhsa_float_denorm_mode_32 3
.end_amdhsa_kernel
"""
def srd(p, d, b, nbytes, off_sgpr=None):
    if off_sgpr is None:
        p(f"s_mov_b32 s{d}, s{b}")
        p(f"s_and_b32 s{d+1}, s{b+1}, 0xffff")
        p(f"s_mov_b32 s{d+2}, {nbytes:#x}")
    else:
        p(f"s_add_u32 s{d}, s{b}, s{off_sgpr}")
        p(f"s_addc_u32 s{d+1}, s{b+1}, 0")
        p(f"s_and_b32 s{d+1}, s{d+1}, 0xffff")
        p(f"s_sub_u32 s{d+2}, {nbytes:#x}, s{off_sgpr}")
    p(f"s_mov_b32 s{d+3}, 0x20000")

PROF_BASE = 0x2700000
PROF = False
vP = 97
def stamp(p, i):
    if PROF:
        p("s_memrealtime s[92:93]"); p("s_memtime s[94:95]"); p("s_waitcnt lgkmcnt(0)")
        p(f"v_writelane_b32 v{vP}, s92, {2*i}"); p(f"v_writelane_b32 v{vP}, s94, {2*i+1}")
def tr_a(): return ["s_memrealtime s[96:97]", "s_memtime s[98:99]"] if PROF else []
def tr_b(cnt, add, vl, va=98, vt=96):
    return [f"s_add_u32 s93, s{cnt}, {add}", f"v_cmp_eq_u32 vcc, s93, v{vl}", f"v_mov_b32 v{vt}, s96", "s_nop 0", f"v_cndmask_b32 v{va}, v{va}, v{vt}, vcc",
            f"v_mov_b32 v{vt}, s98", f"v_cndmask_b32 v{va+1}, v{va+1}, v{vt}, vcc"] if PROF else []
def prof_out(p, kidx, last, srd, extra=None):
    if PROF:
        p("s_waitcnt vmcnt(0)"); stamp(p, last)
        if extra is not None: p(f"v_writelane_b32 v{vP}, s{extra}, 62")
        p("s_getreg_b32 s92, hwreg(HW_REG_XCC_ID)"); p(f"v_writelane_b32 v{vP}, s92, 60")
        p("s_getreg_b32 s92, hwreg(HW_REG_HW_ID)"); p(f"v_writelane_b32 v{vP}, s92, 61")
        p(f"s_lshl_b32 s92, s2, 11"); p(f"s_add_u32 s92, s92, {PROF_BASE + 0x100000 + kidx * 0x80000:#x}")
        p(f"v_lshlrev_b32 v96, 3, v0")
        p(f"buffer_store_dwordx2 v[98:99], v96, s[{srd}:{srd+3}], s92 offen")
        p(f"s_lshl_b32 s92, s2, 10"); p(f"s_add_u32 s92, s92, {PROF_BASE + kidx * 0x40000:#x}")
        p(f"v_lshlrev_b32 v96, 2, v0"); p("v_and_b32 v96, 0x3ff, v96")
        p(f"buffer_store_dword v{vP}, v96, s[{srd}:{srd+3}], s92 offen")

def wave_sum(p, r):
    for sh in (1, 2, 4, 8):
        p("s_nop 1"); p(f"v_add_f32_dpp v{r}, v{r}, v{r} row_shr:{sh} row_mask:0xf bank_mask:0xf bound_ctrl:0")
    p("s_nop 1"); p(f"v_add_f32_dpp v{r}, v{r}, v{r} row_bcast:15 row_mask:0xa bank_mask:0xf")
    p("s_nop 1"); p(f"v_add_f32_dpp v{r}, v{r}, v{r} row_bcast:31 row_mask:0xc bank_mask:0xf")

def gen_ln(opt):
    p = Prog(); begin(p, "ln_kernel")
    p.c("LayerNorm (no affine), one row per wave; writes xn in MFMA-fragment order")
    p("""s_cmp_ge_u32 s2, 256
    s_cbranch_scc1 L_ln_end""")
    stamp(p, 0)
    p("""s_load_dwordx2 s[4:5], s[0:1], 0
    s_load_dwordx2 s[6:7], s[0:1], 80
    v_lshrrev_b32 v1, 6, v0
    v_and_b32 v2, 63, v0
    s_lshl_b32 s3, s2, 3
    v_add_u32 v3, s3, v1
    v_lshlrev_b32 v12, 11, v3
    v_lshrrev_b32 v13, 2, v2
    v_and_b32 v14, 3, v2
    v_lshl_add_u32 v12, v13, 6, v12
    v_lshl_add_u32 v12, v14, 3, v12
    s_waitcnt lgkmcnt(0)""")
    srd(p, 8, 4, 2048 * 1024 * 2)
    srd(p, 12, 6, WS_BYTES)
    p(VM("x", "buffer_load_dwordx2 v[4:5], v12, s[8:11], 0 offen"))
    p(VM("x", "buffer_load_dwordx2 v[6:7], v12, s[8:11], 0 offen offset:32"))
    p(VM("x", "buffer_load_dwordx2 v[8:9], v12, s[8:11], 0 offen offset:1024"))
    p(VM("x", "buffer_load_dwordx2 v[10:11], v12, s[8:11], 0 offen offset:1056"))
    p.c("output offset: t*524288 + kstep*16384 + qb16*1024 + g*256 + (row%16)*16")
    p("""v_lshrrev_b32 v15, 8, v3
    v_lshlrev_b32 v15, 19, v15
    v_lshl_add_u32 v15, v13, 14, v15
    v_bfe_u32 v32, v3, 4, 4
    v_lshl_add_u32 v15, v32, 10, v15
    v_lshl_add_u32 v15, v14, 8, v15
    v_and_b32 v32, 15, v3
    v_lshl_add_u32 v15, v32, 4, v15
    s_mov_b32 s16, 0x40000""")
    p(WV("x"))
    for i in range(8):
        p(f"v_lshlrev_b32 v{16+2*i}, 16, v{4+i}")
        p(f"v_and_b32 v{17+2*i}, 0xffff0000, v{4+i}")
    p("v_add_f32 v32, v16, v17")
    for i in range(18, 32): p(f"v_add_f32 v32, v32, v{i}")
    wave_sum(p, 32)
    p("""s_nop 0
    v_readlane_b32 s20, v32, 63
    s_nop 1
    v_mov_b32 v33, s20
    v_mul_f32 v33, 0x3a800000, v33""")
    p("v_sub_f32 v34, v16, v33"); p("v_mul_f32 v32, v34, v34")
    for i in range(17, 32):
        p(f"v_sub_f32 v34, v{i}, v33"); p("v_fmac_f32 v32, v34, v34")
    wave_sum(p, 32)
    p("""s_nop 0
    v_readlane_b32 s20, v32, 63
    s_nop 1
    v_mov_b32 v34, s20
    v_mul_f32 v34, 0x3a800000, v34
    v_cvt_pk_bf16_f32 v33, v33, v34
    v_and_b32 v34, 0xffff0000, v33
    v_lshlrev_b32 v33, 16, v33""")
    p(f"v_add_f32 v34, {f32(1e-5):#x}, v34")
    p("""v_cvt_pk_bf16_f32 v34, v34, v34
    v_lshlrev_b32 v34, 16, v34
    v_sqrt_f32 v34, v34
    s_nop 0
    v_cvt_pk_bf16_f32 v34, v34, v34
    v_lshlrev_b32 v34, 16, v34
    v_rcp_f32 v34, v34""")
    for i in range(8):
        p(f"v_sub_f32 v{16+2*i}, v{16+2*i}, v33")
        p(f"v_sub_f32 v{17+2*i}, v{17+2*i}, v33")
        p(f"v_cvt_pk_bf16_f32 v35, v{16+2*i}, v{17+2*i}")
        p(f"v_lshlrev_b32 v{16+2*i}, 16, v35")
        p(f"v_and_b32 v{17+2*i}, 0xffff0000, v35")
        p(f"v_mul_f32 v{16+2*i}, v{16+2*i}, v34")
        p(f"v_mul_f32 v{17+2*i}, v{17+2*i}, v34")
        p(f"v_cvt_pk_bf16_f32 v{4+i}, v{16+2*i}, v{17+2*i}")
    p("buffer_store_dwordx4 v[4:7], v15, s[12:15], 0 offen")
    p("buffer_store_dwordx4 v[8:11], v15, s[12:15], s16 offen")
    prof_out(p, 0, 1, 12)
    p("L_ln_end:")
    p("s_endpgm")
    return p, desc("ln_kernel", 104 if PROF else 40, 102, 104 if PROF else 40)

M16 = "v_mfma_f32_16x16x32_bf16"
M32 = "v_mfma_f32_32x32x16_bf16"
def spread(dst, items, gaps):
    assert len(items) <= len(gaps), (len(items), len(gaps))
    for x, g in zip(items, gaps): dst[g].append(x)

def gen_main(opt):
    p = Prog(); begin(p, "main_kernel")
    vX = 1; vWd = [2, 3, 4, 5]; vLane = 6; vTmp = 7
    vT = list(range(8, 16)); WF = 16; XF = 32
    vK = list(range(100, 108)); vV = list(range(108, 112)); vKd = [112, 113]; vVd = 114; vSt = 115; vPf = 115
    ET = 116; vL = [124, 125]; vLu = [[126, 127], [18, 19]]
    def S(par, q): return 128 + 32 * par + 16 * q
    def P(par, t, q): return 192 + 16 * par + 8 * t + 4 * q
    def NM(q): return 224 + 16 * q
    def accQ(d, qb): return 128 + (d * 4 + qb) * 4
    def accH(i, qb): return (i * 4 + qb) * 4
    def O(db, q): return (db * 2 + q) * 16
    def QF(q, s): return 32 + (q * 8 + s) * 4
    def KF(s): return 192 + 4 * s
    def VF(f): return 224 + 4 * f
    sW = 3; rXN = 8; rWq = 12; rW1 = 16; rK = 20; rV = 24; rWS = 28
    sX = 36; sWq = 37; sW1 = 38; sCnt = 39; sKV = 40; sM1 = 41; sMK = 42; sMV = 43; sThr = 44; sH = 45; sT = 46
    sHo = 47; sHs = 48; sOo = 49; sVo = 50; sSite = 51; sPo = 66; sP2 = 67; sKK = 32; sJ = 33; sRo = 34; sRx = 35; sXb = 68; sFill = 69
    sHook = 70; sOwn = 71; rX = 72; rOut = 76; rDbg = 80
    PH1 = 65536; VRING = 32768
    cWd = [4, 5]; cAd = 1; vDb = 2; vTbl = 3; vFl = 8; vPo = 9; vZ = 10; vOne = 11; vExp = 12; cXo = 13; cGo = 14; cOo = 15; vPfD = cOo
    cA = [100, 101]; cT = [[102, 103, 104, 105], [106, 107, 112, 113]]
    PARK = 128
    park_early = cWd + [cAd, cXo]
    park_late = cA + cT[0] + cT[1] + [cOo]
    def AF(buf, nb): return 16 + buf * 16 + nb * 4
    def BF(buf, rb): return 48 + buf * 16 + rb * 4
    XR = 224; GR = 192
    def acc(nb, rb): return 128 + (nb * 4 + rb) * 4
    rW = 12; rAE = 8; rAct = rWS
    sA = 32; sWo = 33; sBase = 34; sK = 35; sR = 36; sAn = 37; sG = 38; sTy = 41; sGl = 47; sXo = 48; sWin = 68; sB0 = 69
    sFl = 100; sXt = 101; sMask = 66; sR0 = 16; sM = 52

    p.c("[Q | relu(H)] = xn @ [Wq_h | W1 slice], flash attention for (head h, 256 query rows), then one 128x128 tile of")
    p.c("g = silu(H @ W2) or of out = x + (O @ Wo) * g")
    p("""s_cmp_ge_u32 s2, 256
    s_cbranch_scc1 L_end""")
    stamp(p, 0)
    p("""s_load_dwordx4 s[52:55], s[0:1], 8
    s_load_dwordx2 s[56:57], s[0:1], 24
    s_load_dwordx2 s[58:59], s[0:1], 48
    s_load_dwordx2 s[60:61], s[0:1], 80
    s_load_dwordx2 s[62:63], s[0:1], 32
    s_load_dwordx2 s[64:65], s[0:1], 56
    s_load_dwordx4 s[76:79], s[0:1], 64
    s_load_dwordx2 s[72:73], s[0:1], 0
    v_lshrrev_b32 v7, 6, v0
    v_and_b32 v6, 63, v0
    s_and_b32 s4, s2, 7
    s_lshr_b32 s5, s2, 3
    v_readfirstlane_b32 s3, v7
    s_lshl_b32 s45, s4, 2
    s_and_b32 s4, s5, 3
    s_add_u32 s45, s45, s4
    s_lshr_b32 s46, s5, 2""")
    p(f"s_lshl_b32 s4, s{sW}, 12")
    p(f"v_lshlrev_b32 v{vX}, 4, v{vLane}")
    p(f"v_mov_b32 v{vSt}, v{vX}")
    p(f"v_add_u32 v{vX}, s4, v{vX}")
    p(f"s_lshl_b32 s{sX}, s{sT}, 19")
    p(f"""v_lshrrev_b32 v20, 4, v{vLane}
    v_bfe_u32 v21, v{vLane}, 1, 3
    v_and_b32 v22, 1, v{vLane}
    s_lshl_b32 s4, s{sW}, 3
    s_and_b32 s5, s{sH}, 1
    s_movk_i32 s6, 7168""")
    for i in range(2):
        p(f"""v_add_u32 v23, {4*i}, v20
        v_xor_b32 v16, v21, v23
        v_add_u32 v23, s4, v23
        v_lshlrev_b32 v17, 13, v23
        v_lshl_add_u32 v17, v16, 5, v17
        v_lshl_add_u32 v{vWd[i]}, v22, 4, v17
        v_add_u32 v18, s5, v16
        v_cmp_eq_u32 vcc, 7, v18
        v_mul_lo_u32 v17, v23, s6
        s_nop 0
        v_cndmask_b32 v18, v18, 0, vcc
        v_cmp_eq_u32 vcc, 7, v16
        v_lshl_add_u32 v17, v18, 5, v17
        v_lshl_add_u32 v17, v22, 4, v17
        v_mov_b32 v18, {OOR:#x}
        v_cndmask_b32 v{vWd[2+i]}, v17, v18, vcc""")
    p(f"""s_lshl_b32 s{sMK}, s{sW}, 11
    s_add_u32 s{sM1}, s{sMK}, {PH1:#x}
    s_mov_b32 s{sXb}, s{sX}
    s_bfe_u32 s4, s2, 0x20003
    s_lshl_b32 s4, s4, 1
    s_add_u32 s{sRo}, s4, s{sT}
    s_and_b32 s4, s2, 3
    s_lshl_b32 s{sRx}, s4, 3
    s_mov_b32 s{sJ}, -1""")
    p("s_waitcnt lgkmcnt(0)")
    srd(p, rXN, 60, WS_BYTES)
    p(f"s_lshl_b32 s4, s{sH}, 8"); srd(p, rWq, 56, 1024 * 4096 * 2, 4)
    p(f"s_mul_i32 s4, s{sH}, 224"); srd(p, rW1, 58, 1024 * 3584 * 2, 4)
    def x_load(j, b):
        return VM(f"x{j}", f"buffer_load_dwordx4 {v(XF + (j % 4) * 16 + 4 * b, 4)}, v{vX}, s[{rXN}:{rXN+3}], s{sX} offen offset:{b*1024}")
    def w_m0(j, i):
        return f"s_add_u32 m0, s{sM1}, {(j % 4) * 16384 + (i >> 1) * 8192 + (i & 1) * 1024}"
    def w_dma(j, i):
        r, so = (rWq, sWq) if i < 2 else (rW1, sW1)
        return VM(f"w{j}", f"buffer_load_dwordx4 v{vWd[i]}, s[{r}:{r+3}], s{so} offen lds")
    def t_read(F, half):
        j, n = divmod(F, 15)
        part, u = divmod(n, 8)
        off = (j % 4) * 16384 + part * 8192 + half * 4096
        return DS(f"wf{F}", f"ds_read_b64_tr_b16 {v(WF + (F % 4) * 4 + 2 * half, 2)}, v{vT[u]} offset:{off}")
    def k_m0(u): return f"s_add_u32 m0, s{sMK}, {(u % 4) * 8192}"
    def v_m0(u): return f"s_add_u32 m0, s{sMV}, {(u % 4) * 8192}"
    def k_dma(u, i, so): return VM(f"k{u}", f"buffer_load_dwordx4 v{vKd[i]}, s[{rK}:{rK+3}], s{so} offen offset:{i*1024} lds")
    def v_dma(u, i, so): return VM(f"v{u}", f"buffer_load_dwordx4 v{vVd}, s[{rV}:{rV+3}], s{so} offen offset:{i*1024} lds")

    w_off = [f"s_lshl_b32 s{sWq}, s{sKK}, 18", f"s_mul_i32 s{sW1}, s{sKK}, {32*7168}"]
    kk_next = [f"s_add_u32 s{sJ}, s{sJ}, 1", f"s_add_u32 s4, s{sJ}, s{sRo}", "s_and_b32 s4, s4, 7", f"s_add_u32 s5, s{sJ}, s{sRx}", "s_and_b32 s5, s5, 24",
               f"s_or_b32 s{sKK}, s4, s5", f"s_lshl_b32 s{sX}, s{sKK}, 14", f"s_add_u32 s{sX}, s{sX}, s{sXb}"]
    p(kk_next)
    for j in range(3):
        for b in range(4): p(x_load(j, b))
        p(w_off); p(kk_next)
        for i in range(4 if j < 2 else 3):
            p(w_m0(j, i)); p("s_nop 0"); p(w_dma(j, i))
    p(f"""v_lshrrev_b32 v20, 2, v{vLane}
    v_and_b32 v21, 3, v{vLane}
    v_and_b32 v22, 7, v20
    v_lshlrev_b32 v23, 8, v20
    v_lshl_add_u32 v23, v22, 5, v23
    v_lshl_add_u32 v23, v21, 3, v23
    v_add_u32 v23, {PH1:#x}, v23""")
    for u in range(8): p(f"v_xor_b32 v{vT[u]}, {u*32}, v23")
    p(f"""v_and_b32 v20, 31, v{vLane}
    v_lshrrev_b32 v21, 5, v{vLane}
    v_and_b32 v22, 15, v{vLane}
    v_xor_b32 v21, v21, v22
    v_lshlrev_b32 v23, 8, v20
    v_lshl_add_u32 v23, v21, 4, v23""")
    for s in range(8): p(f"v_xor_b32 v{vK[s]}, {s*32}, v23")
    p(f"""v_lshrrev_b32 v20, 5, v{vLane}
    v_bfe_u32 v21, v{vLane}, 2, 2
    v_lshl_add_u32 v20, v20, 2, v21
    v_lshlrev_b32 v23, 8, v20
    v_lshl_add_u32 v23, v21, 6, v23
    v_bfe_u32 v20, v{vLane}, 4, 1
    v_lshl_add_u32 v23, v20, 5, v23
    v_and_b32 v20, 3, v{vLane}
    v_lshl_add_u32 v23, v20, 3, v23
    v_add_u32 v23, {VRING:#x}, v23""")
    for db in range(4): p(f"v_xor_b32 v{vV[db]}, {db*64}, v23")
    p(f"""v_lshrrev_b32 v20, 4, v{vLane}
    v_and_b32 v21, 15, v{vLane}
    s_lshl_b32 s4, s{sW}, 3
    v_add_u32 v20, s4, v20""")
    for i in range(2):
        p(f"""v_add_u32 v22, {4*i}, v20
        v_and_b32 v22, 15, v22
        v_xor_b32 v22, v22, v21
        v_lshlrev_b32 v23, 8, v20
        v_lshl_add_u32 v{vKd[i]}, v22, 4, v23""")
    p(f"""v_lshrrev_b32 v22, 4, v{vLane}
    v_bfe_u32 v21, v{vLane}, 2, 2
    v_xor_b32 v22, v22, v21
    v_lshlrev_b32 v23, 8, v20
    v_lshl_add_u32 v23, v22, 6, v23
    v_and_b32 v21, 3, v{vLane}
    v_lshl_add_u32 v{vVd}, v21, 4, v23""")
    p(f"""s_add_u32 s{sMV}, s{sMK}, {VRING:#x}
    s_mov_b32 s{sThr}, 0x45800000""")
    p(f"""s_lshl_b32 s4, s{sT}, 1
    s_lshr_b32 s5, s{sW}, 1
    s_add_u32 s4, s4, s5
    s_and_b32 s5, s{sW}, 1
    s_lshl_b32 s6, s4, 5
    s_add_u32 s6, s6, s{sH}
    s_lshl1_add_u32 s6, s6, s5
    s_lshl_b32 s6, s6, 1
    s_add_u32 s{sOwn}, s6, {FLAG_BASE:#x}
    s_lshl_b32 s5, s5, 12
    s_mul_i32 s6, s{sH}, 7
    s_add_u32 s6, s6, 1
    s_lshr_b32 s6, s6, 1
    s_mul_i32 s7, s4, 112
    s_add_u32 s7, s7, s6
    s_lshl_b32 s7, s7, 13
    s_add_u32 s7, s7, s5
    s_add_u32 s{sHo}, s7, {H_BASE:#x}
    s_and_b32 s6, s{sH}, 1
    s_cmp_eq_u32 s6, 0
    s_mov_b32 s6, {3*8192:#x}
    s_cselect_b32 s6, s6, {(-8192 + 8) & 0xffffffff:#x}
    s_add_u32 s{sHs}, s{sHo}, s6
    s_lshl_b32 s7, s4, 7
    s_lshl_b32 s6, s{sH}, 2
    s_add_u32 s7, s7, s6
    s_lshl_b32 s7, s7, 13
    s_add_u32 s7, s7, s5
    s_add_u32 s{sOo}, s7, {O_BASE:#x}""")
    srd(p, 84, 62, 4096 * 1024 * 2); srd(p, 88, 64, 3584 * 1024 * 2)
    p(f"""s_lshl_b32 s4, s2, 2
    s_add_u32 s4, s4, s{sW}
    s_lshl_b32 s{sPo}, s4, 13
    s_mul_i32 s{sP2}, s4, 7168""")
    srd(p, rWS, 60, WS_BYTES)
    p(f"s_lshl_b32 s4, s{sH}, 19"); srd(p, rK, 52, 32 * 2048 * 256, 4); srd(p, rV, 54, 32 * 2048 * 256, 4)
    srd(p, rDbg, 78, 256); srd(p, rOut, 76, 2048 * 2048); srd(p, rX, 72, 2048 * 2048)
    p(f"""s_lshl_b32 s4, s2, 14
    s_lshl_b32 s5, s{sW}, 12
    s_add_u32 s4, s4, s5
    s_add_u32 s{sFill}, s4, {G_BASE:#x}
    s_mov_b32 s{sHook}, 0
    v_cmp_eq_u32 vcc, 0, v{vLane}
    v_mov_b32 v{ET+5}, {OOR:#x}
    v_mov_b32 v{ET+4}, 0
    v_cndmask_b32 v{ET+5}, v{ET+5}, 0, vcc""")
    for i in range(4): p(f"v_mov_b32 v{ET+i}, -1")
    for i in range(8): p(f"s_add_u32 s{sM+i}, s5, {i * 16384}")
    def park(r, src): p(f"v_accvgpr_write_b32 a{PARK + (park_early + park_late).index(r)}, v{src}")
    def unpark(r): return f"v_accvgpr_read_b32 v{r}, a{PARK + (park_early + park_late).index(r)}"
    p(f"""s_lshr_b32 s4, s{sW}, 1
    s_lshl_b32 s4, s4, 13
    s_add_u32 s4, s4, 2048
    v_add_u32 v20, s4, v{vSt}
    v_add_u32 v21, 0x10000, v20
    v_add_u32 v22, s{sMK}, v{vSt}""")
    park(cA[0], 20); park(cA[1], 21); park(cAd, 22)
    p(f"""v_lshrrev_b32 v16, 5, v{vLane}
    v_bfe_u32 v17, v{vLane}, 2, 3
    v_and_b32 v18, 3, v{vLane}
    v_lshlrev_b32 v19, 12, v16
    v_lshl_add_u32 v19, v17, 8, v19
    v_lshl_add_u32 v19, v17, 5, v19
    v_lshl_add_u32 v19, v18, 3, v19
    s_and_b32 s4, s{sW}, 1
    s_lshl_b32 s4, s4, 7
    v_xor_b32 v19, s4, v19""")
    for i in range(4):
        p(f"v_xor_b32 v20, {i*32}, v19"); p("v_add_u32 v21, 0x10000, v20")
        park(cT[0][i], 20); park(cT[1][i], 21)
    p(f"""v_lshrrev_b32 v16, 4, v{vLane}
    v_bfe_u32 v17, v{vLane}, 1, 3
    v_and_b32 v18, 1, v{vLane}
    s_lshl_b32 s4, s{sW}, 3""")
    for i in range(2):
        p(f"""v_add_u32 v19, {4*i}, v16
        v_xor_b32 v20, v17, v19
        v_add_u32 v19, s4, v19
        v_lshlrev_b32 v19, 11, v19
        v_lshl_add_u32 v19, v20, 5, v19
        v_lshl_add_u32 v19, v18, 4, v19
        v_subrev_u32 v19, {i*1024}, v19""")
        park(cWd[i], 19)
    p(f"""v_and_b32 v19, 15, v{vLane}
    v_lshlrev_b32 v19, 11, v19
    s_lshr_b32 s5, s{sW}, 1
    s_lshl_b32 s4, s5, 17
    s_and_b32 s5, s{sW}, 1
    s_lshl_b32 s5, s5, 7
    s_add_u32 s4, s4, s5
    v_add_u32 v19, s4, v19
    v_lshl_add_u32 v20, v16, 3, v19
    v_bfe_u32 v17, v{vLane}, 4, 1
    v_bfe_u32 v18, v{vLane}, 5, 1
    v_lshl_add_u32 v19, v17, 5, v19
    v_lshl_add_u32 v19, v18, 4, v19""")
    park(cXo, 20); park(cOo, 19)
    for i in range(112): p(f"v_accvgpr_write_b32 a{i}, 0")
    for i in range(128, 256): p(f"v_mov_b32 v{i}, 0")
    p(WV("w0", "x0")); p("s_barrier")
    stamp(p, 1)
    for F in range(3): p(t_read(F, 0)); p(t_read(F, 1))
    p(WL("wf0"))

    kvpre = [[("k", 0), ("k", 1)], [("k", 2), ("v", 0), ("k", 3)], [("v", 1), ("v", 2)]]
    def ph1_step(j, loop_tail=None):
        mf = []; g = [[] for _ in range(60)]
        for n in range(15):
            F = 15 * j + n
            for qb in range(4):
                ac = v(accQ(n, qb), 4) if n < 8 else a_(accH(n - 8, qb), 4)
                mf.append(f"{M16} {ac}, {v(WF + (F % 4) * 4, 4)}, {v(XF + (j % 4) * 16 + 4 * qb, 4)}, {ac}")
            if F + 3 < 15 * 32:
                g[4*n].append(t_read(F + 3, 0)); g[4*n+1].append(t_read(F + 3, 1))
            if F + 1 < 15 * 32:
                g[4*n+3].append(WL(f"wf{F+1}"))
        if j + 2 < 32:
            g[1].insert(0, w_m0(j + 2, 3)); g[2].append(w_dma(j + 2, 3))
        if j + 3 < 32:
            for b in range(4): g[6 + 4 * b].append(x_load(j + 3, b))
            for x, gp in zip(w_off + kk_next, (20, 21, 22, 24, 25, 26, 28, 29, 30, 32)): g[gp].insert(0, x)
            for i in range(3):
                g[49 + 4 * i].insert(0, w_m0(j + 3, i)); g[50 + 4 * i].append(w_dma(j + 3, i))
        else:
            for q, (kind, u) in enumerate(kvpre[j - 29]):
                g0 = 6 + 16 * q
                g[g0 - 2].insert(0, f"s_mov_b32 s{sVo}, {u * 8192}")
                g[g0 - 1].insert(0, k_m0(u) if kind == "k" else v_m0(u))
                for i in range(2):
                    g[g0 + 4 * i].append(k_dma(u, i, sVo) if kind == "k" else v_dma(u, i, sVo))
        if j + 1 < 32:
            g[46].append(WV(f"w{j+1}", f"x{j+1}"))
            g[47].append("s_barrier")
        if j == 28:
            for i in range(4): g[26 + 4 * i].append(VM("fill", f"buffer_store_dwordx4 {v(ET,4)}, v{vSt}, s[{rWS}:{rWS+3}], s{sFill} offen offset:{i*1024} sc1"))
            g[42].append(VM("fill", f"buffer_store_short v{ET+4}, v{ET+5}, s[{rWS}:{rWS+3}], s{sOwn} offen sc1"))
        if j == 31:
            g[51].append(f"v_mov_b32 v{vZ}, v{ET+5}"); g[52].append(f"v_mov_b32 v{vOne}, 1")
            g[54].append(f"v_lshlrev_b32 v{vPo}, 2, v{vLane}"); g[56].append(f"v_mov_b32 v{cGo}, v{vSt}")
        if loop_tail: g[59].extend(loop_tail)
        p.block(mf, g)
    def ph1_body(it):
        p(tr_a())
        for q in range(4):
            if q == 3: p(tr_b(sCnt, 32, vLane))
            ph1_step(4 * it + q, [f"s_sub_u32 s{sCnt}, s{sCnt}, 1", f"s_cmp_lg_u32 s{sCnt}, 0", "s_cbranch_scc1 L_ph1"] if q == 3 else None)
    p.loop(7, ph1_body, "L_ph1", sCnt)
    for j in range(28, 32): ph1_step(j)

    p("s_nop 7")
    stamp(p, 2)
    def k_read(u, s): return DS(f"kf{u}", f"ds_read_b128 {a_(KF(s),4)}, v{vK[s]} offset:{(u % 4) * 8192}")
    p(WV("k0", "k1")); p("s_barrier")
    for s_ in range(8): p(k_read(0, s_))
    p(f"s_mov_b32 s4, {QSCALE:#x}"); p(f"s_mov_b32 s5, {QSCALE:#x}")
    pend = []
    for q in range(2):
        for d in range(8):
            b = accQ(d, 2 * q); f = QF(q, d)
            for e in range(4): p(f"v_pk_mul_f32 {v(b+2*e,2)}, {v(b+2*e,2)}, s[4:5]")
            p(pend)
            for e in range(4): p(f"v_cvt_pk_bf16_f32 v{f+e}, v{b+2*e}, v{b+2*e+1}")
            pend = [f"v_permlane16_swap_b32 v{f}, v{f+2}", f"v_permlane16_swap_b32 v{f+1}, v{f+3}"]
    p("s_nop 1"); p(pend)
    hep = []
    k = 0
    for pr in range(4):
        if 0 < pr < 3: hep.append(f"s_add_u32 s{sHo}, s{sHo}, 8192")
        for qb in range(4):
            b = 16 + (k % 2) * 8; k += 1
            n = 8 if pr < 3 else 4
            for e in range(n): hep.append(f"v_accvgpr_read_b32 v{b+e}, a{accH(2 * pr + e // 4, qb) + e % 4}")
            for e in range(n // 2): hep.append(f"v_cvt_pk_bf16_f32 v{b+e}, v{b+2*e}, v{b+2*e+1}")
            for e in range(n // 2): hep.append(f"v_pk_max_i16 v{b+e}, v{b+e}, 0")
            if pr < 3: hep.append(VM("hst", f"buffer_store_dwordx4 {v(b,4)}, v{vSt}, s[{rWS}:{rWS+3}], s{sHo} offen offset:{qb*1024} sc1"))
            else: hep.append(VM("hst", f"buffer_store_dwordx2 {v(b,2)}, v{vSt}, s[{rWS}:{rWS+3}], s{sHs} offen offset:{qb*1024} sc1"))

    def v_read(u, f, half):
        t, db = divmod(f, 4)
        return DS(f"vf{u}_{t}", f"ds_read_b64_tr_b16 {a_(VF(f) + 2 * half, 2)}, v{vV[db]} offset:{(u % 4) * 8192 + t * 4096 + half * 2048}")
    def qk_mf(u, first_c0=False):
        r = []
        for s in range(8):
            for q in range(2):
                d = v(S(u % 2, q), 16)
                c = ("0" if first_c0 else v(NM(q), 16)) if s == 0 else d
                r.append(f"{M32} {d}, {a_(KF(s),4)}, {v(QF(q,s),4)}, {c}")
        return r
    def pv_mf(u):
        r = []
        for t in range(2):
            for db in range(4):
                for q in range(2):
                    r.append(f"{M32} {a_(O(db,q),16)}, {a_(VF(4*t+db),4)}, {v(P(u % 2, t, q), 4)}, {'0' if (u == 0 and t == 0) else a_(O(db,q),16)}")
        return r
    def rowmax(par, q, dst, tmp):
        s = S(par, q)
        p(f"v_max3_f32 v{dst}, v{s}, v{s+1}, v{s+2}")
        for i in range(3, 15, 2): p(f"v_max3_f32 v{dst}, v{dst}, v{s+i}, v{s+i+1}")
        p(f"v_max_f32 v{dst}, v{dst}, v{s+15}")
        p(f"v_mov_b32 v{tmp}, v{dst}")
        p("s_nop 1")
        p(f"v_permlane32_swap_b32 v{dst}, v{tmp}")
        p(f"v_max_f32 v{dst}, v{dst}, v{tmp}")

    stamp(p, 3)
    p(f"s_mov_b32 s{sKV}, {4*8192}"); p(k_m0(4))
    p(WL("kf0")); p("s_barrier")
    p(k_dma(4, 0, sKV)); p(k_dma(4, 1, sKV))
    mf = qk_mf(0, True); g = [[] for _ in range(16)]
    for s in range(8): g[2 * s + 1].append(k_read(1, s))
    for i in range(16):
        n = 5 if i % 2 else 6
        g[i] += hep[:n]; hep = hep[n:]
    p.block(mf, g)
    p(hep)
    for q in range(2):
        rowmax(0, q, ET, ET + 1)
        p(f"v_sub_f32 v{NM(q)}, 0, v{ET}"); p(f"v_sub_f32 v{NM(q)+1}, 0, v{ET}")
        for i in range(0, 16, 2): p(f"v_pk_add_f32 {v(S(0,q)+i,2)}, {v(S(0,q)+i,2)}, {v(NM(q),2)}")
        for i in range(2, 16, 2): p(f"v_pk_mov_b32 {v(NM(q)+i,2)}, {v(NM(q),2)}, {v(NM(q),2)}")
        p(f"v_mov_b32 v{vL[q]}, 0")
    p(f"s_mov_b32 s{sKV}, {5*8192}")
    p(f"s_mov_b32 s{sVo}, {3*8192}")
    p(WL("kf1"))

    rare_sites = []
    EARLY = 4
    def sm_items(u):
        par = u % 2
        it = []
        order = [(q, 8 * t + r) for t in range(2) for q in range(2) for r in range(8)]
        seen = [0, 0]; prev = [None, None]
        for e, (q, r) in enumerate(order):
            tmp = ET + e % 8; eg = e - EARLY
            it.append((eg, 1, f"v_exp_f32 v{tmp}, v{S(par,q)+r}"))
            ag = eg + 1
            if seen[q] == 0: prev[q] = tmp
            elif seen[q] == 1: it.append((ag, 2, f"v_add_f32 v{vLu[par][q]}, v{prev[q]}, v{tmp}"))
            else: it.append((ag, 2, f"v_add_f32 v{vLu[par][q]}, v{vLu[par][q]}, v{tmp}"))
            seen[q] += 1
            if r % 2 == 1:
                it.append((ag, 3, f"v_cvt_pk_bf16_f32 v{P(par, r // 8, q) + (r % 8) // 2}, v{ET + (e-1) % 8}, v{tmp}"))
        return sorted(it, key=lambda x: (x[0], x[1]))
    def l_adds(u): return [f"v_add_f32 v{vL[q]}, v{vL[q]}, v{vLu[u % 2][q]}" for q in range(2)]
    def slot(u, loop_tail=None, site=None, pf=None, extra=None):
        do_qk = u + 1 < 64; do_pv = u >= 1
        mq = qk_mf(u + 1) if do_qk else [None] * 16
        mp = pv_mf(u - 1) if do_pv else [None] * 16
        mf = mq + mp
        sal = [[] for _ in range(32)]; mem = [[] for _ in range(32)]; val = [[] for _ in range(32)]
        if do_pv:
            for i, gp in enumerate((0, 2, 3, 4, 6, 7, 8, 10, 11, 12)): mem[gp].append(v_read(u - 1, 3 + i // 2, i % 2))
            sal[15].append(WL(f"vf{u-1}_0")); sal[23].append(WL(f"vf{u-1}_1"))
            val[1] += l_adds(u - 1)
        if 0 < u and u + 4 < 64:
            sal[3].append(k_m0(u + 4))
            mem[5].append(k_dma(u + 4, 0, sKV)); mem[9].append(k_dma(u + 4, 1, sKV))
            sal[10].append(f"s_add_u32 s{sKV}, s{sKV}, 8192")
        if 0 < u and u + 2 < 64:
            sal[16].append(v_m0(u + 2))
            mem[17].append(v_dma(u + 2, 0, sVo)); mem[21].append(v_dma(u + 2, 1, sVo))
            sal[22].append(f"s_add_u32 s{sVo}, s{sVo}, 8192")
        if pf == 0:
            mem[25].append(VM("pf", f"buffer_load_dword v{vPfD}, v{vPf}, s[84:87], s{sPo} offen")); sal[26].append(f"s_add_u32 s{sPo}, s{sPo}, 640")
        if pf == 2:
            mem[25].append(VM("pf", f"buffer_load_dword v{vPfD}, v{vPf}, s[88:91], s{sP2} offen")); sal[26].append(f"s_add_u32 s{sP2}, s{sP2}, 512")
        tags = [f"v{u}"] + ([f"k{u+2}"] if u + 2 < 64 else [])
        sal[12].append(WV(*tags))
        sal[13].append("s_barrier")
        if u + 2 < 64:
            for s, gp in enumerate((14, 15, 16, 18, 19, 20, 22, 23)): mem[gp].append(k_read(u + 2, s))
            sal[31].append(WL(f"kf{u+2}"))
        for i, gp in enumerate((24, 26, 27, 28, 30, 31)): mem[gp].append(v_read(u, i // 2, i % 2))
        for gp, pri, txt in sm_items(u):
            if gp >= 0: val[gp].insert(len(val[gp]) - (2 if gp == 1 and do_pv else 0), txt)
        if do_qk:
            for gp, pri, txt in sm_items(u + 1):
                if gp < 0: val[32 + gp].insert(0 if pri == 1 else len(val[32 + gp]), txt)
        val[33 - EARLY].append(f"v_max_f32 v{vTmp}, v{vLu[u % 2][0]}, v{vLu[u % 2][1]}")
        val[33 - EARLY].append(f"v_cmp_nge_f32 vcc, s{sThr}, v{vTmp}")
        lab = site if site else f"{u}"
        post = [f"s_cbranch_vccnz L_rare_{u % 2}", f"L_back_{lab}:"]
        if (lab, u % 2, bool(loop_tail)) not in rare_sites: rare_sites.append((lab, u % 2, bool(loop_tail)))
        sal[27].append(f"s_mov_b32 s{sSite}, {rare_sites.index((lab, u % 2, bool(loop_tail)))}")
        if loop_tail:
            sal[29].append(loop_tail[0]); post.append(loop_tail[1])
        for i in range(32):
            if mf[i]: p(mf[i])
            p(sal[i] + mem[i] + val[i] + (extra[i] if extra else []))
        p(post)
    p("s_barrier")
    for gp, pri, txt in sm_items(0):
        if gp < 0: p(txt)
    slot(0); slot(1)
    def att_body(it):
        p(tr_a())
        for q in range(4):
            if q == 3 and PROF: p(tr_b(101, 1, vLane)); p("s_sub_u32 s101, s101, 1")
            slot(2 + 4 * it + q, [f"s_sub_u32 s{sCnt}, s{sCnt}, 1", "s_cbranch_scc0 L_att"] if q == 3 else None, site=f"l{q}", pf=q)
    if PROF: p("s_mov_b32 s101, 13")
    p.loop(14, att_body, "L_att", sCnt, init=0)
    p(f"s_cmp_eq_u32 s{sHook}, 0"); p("s_cbranch_scc1 L_hook")

    AHEAD = 6; NS = 128
    def ring(j): return (j + 4) % 8
    def m0(j): return f"s_mov_b32 m0, s{sM + ring(j)}"
    def dma(j, i, r=rAct, so=None):
        if i < 2: return VM(f"d{j}", f"buffer_load_dwordx4 v{cWd[i]}, s[{rW}:{rW+3}], s{sWo} offen offset:{i*1024} lds")
        return VM(f"d{j}", f"buffer_load_dwordx4 v{cAd}, s[{r}:{r+3}], s{(sA, sAn)[j % 2] if so is None else so} offen offset:{i*1024} sc1 lds")
    def adv(jn):
        d = (sA, sAn)[jn % 2]
        return [f"s_add_u32 s{sR}, s{sR}, 8192", f"s_and_b32 s{sR}, s{sR}, {7 * 8192:#x}", f"s_add_u32 s{d}, s{sR}, s{sBase}", f"s_lshl3_add_u32 s{sWo}, s{d}, s{sK}"]
    def poll(): return VM("poll", f"buffer_load_dword v{vFl}, v{vPo}, s[{rWS}:{rWS+3}], s{sFl} offen sc1")
    def publish(): return VM("pub", f"buffer_store_short v{vOne}, v{vZ}, s[{rWS}:{rWS+3}], s{sOwn} offen sc1")
    flag_cmp = f"v_cmp_eq_u32 vcc, v{vExp}, v{vFl}"
    flag_test = f"s_andn2_b64 s[4:5], s[{sMask}:{sMask+1}], vcc ; scc=flag"
    mask_next = f"s_lshl_b64 s[{sMask}:{sMask+1}], s[{sMask}:{sMask+1}], 2"
    cnt_load = f"buffer_load_dword v{vDb}, v{vPo}, s[{rDbg}:{rDbg+3}], 0 offen sc1"
    cnt_test = [f"v_cmp_eq_u32 vcc, 32, v{vDb}", "s_nop 0", "s_and_b32 s4, vcc_lo, 0xff", "s_cmp_eq_u32 s4, 0xff"]
    role1 = [VM("cnt", cnt_load),
        "s_bfe_u32 s17, s2, 0x10002", "s_bfe_u32 s5, s2, 0x30003", "s_lshl3_add_u32 s17, s17, s5",
        "s_bfe_u32 s18, s2, 0x10001", "s_lshr_b32 s5, s2, 6", "s_lshl2_add_u32 s18, s18, s5",
        f"v_bfe_u32 v{vTbl}, v{vLane}, 1, 2", f"v_bfe_u32 v{vFl}, v{vLane}, 3, 1", f"v_lshl_add_u32 v{vTbl}, v{vTbl}, 1, v{vFl}", f"v_add_u32 v{vTbl}, s2, v{vTbl}",
        f"v_and_b32 v{vTbl}, 7, v{vTbl}", f"v_and_b32 v{vFl}, 1, v{vLane}", f"v_lshl_add_u32 v{vTbl}, v{vTbl}, 1, v{vFl}",
        "s_lshl3_add_u32 s5, s17, s18", "s_lshl_b32 s5, s5, 15", f"s_lshl1_add_u32 s{sG}, s{sM}, s5", f"s_add_u32 s{sG}, s{sG}, {G_BASE:#x}",
        "s_lshl_b32 s5, s17, 18", "s_lshl_b32 s6, s18, 8", f"s_add_u32 s{sXt}, s5, s6",
        "s_lshl1_add_u32 s5, s18, s17", "s_and_b32 s5, s5, 7", f"s_lshl_b32 s{sR}, s5, 13", f"s_mov_b32 s{sR0}, s{sR}",
        "s_lshl_b32 s7, s17, 7", f"s_add_u32 s7, s7, {FLAG_BASE:#x}",
        f"s_mov_b32 s{rAE}, s60", f"s_and_b32 s{rAE+1}, s61, 0xffff", f"s_mov_b32 s{rAE+3}, 0x20000", f"s_mov_b32 s{rW+3}, 0x20000",
        f"s_mov_b32 s19, {OOR:#x}", f"s_mov_b32 s{sB0}, {H_BASE - 2048:#x}", f"s_mov_b32 s{sWin}, 0", f"s_mov_b64 s[{sMask}:{sMask+1}], 3"]
    role2 = [f"s_bitcmp0_b32 s2, 0", f"s_cselect_b64 s[4:5], -1, 0", f"s_cselect_b32 s{sTy}, 1, 0",
        f"s_cselect_b32 s{rW}, s62, s64", f"s_cselect_b32 s{rW+1}, s63, s65",
        f"v_cndmask_b32 v{vTbl}, v{vLane}, v{vTbl}, s[4:5]",
        f"s_cselect_b32 s{sFl}, s7, s19", f"s_cselect_b32 s{sGl}, s{sG}, s19",
        f"s_cselect_b32 s{rAE+2}, 0, {WS_BYTES:#x}", f"s_cselect_b32 s{rW+2}, s86, s90",
        f"s_cselect_b32 s4, 16, 14", f"s_cselect_b32 s5, {O_BASE - 2048:#x}, s{sB0}", "s_cselect_b32 s7, 0, 28"]
    role2 = [x + " ; scc=role" if x.startswith("s_") else x for x in role2]
    role3 = ["s_mul_i32 s4, s4, s17", "s_lshl_b32 s4, s4, 16", f"s_add_u32 s{sB0}, s4, s5",
        f"s_and_b32 s{rW+1}, s{rW+1}, 0xffff",
        f"s_lshl_b32 s5, s{sB0}, 3", f"s_sub_u32 s{sK}, s6, s5",
        f"v_cmp_gt_u32 vcc, s7, v{vLane}", f"v_mov_b32 v{vExp}, 0x10001", f"v_lshrrev_b32 v{vFl}, 1, v{vLane}", f"v_cndmask_b32 v{vExp}, v{vExp}, 0, vcc",
        f"v_lshlrev_b32 v{vFl}, 2, v{vFl}", DS("perm", f"ds_bpermute_b32 v{vFl}, v{vFl}, v{vTbl}"),
        f"v_lshlrev_b32 v{vTbl}, 16, v{vTbl}", f"v_add_u32 v{vTbl}, s{sB0}, v{vTbl}", f"v_cmp_gt_u32 vcc, 32, v{vLane}"]
    role4 = [[WV("cnt"), cnt_test[0]], [cnt_test[2], cnt_test[3], "s_cbranch_scc0 L_cnt_wait", "L_cnt_ok:"],
        f"v_readlane_b32 s{sBase}, v{vTbl}, 0", f"v_and_b32 v{vPo}, 4, v{vPo}", [WL("perm"), f"v_lshl_add_u32 v{vPo}, v{vFl}, 3, v{vPo}"],
        f"v_cmp_gt_u32 vcc, 32, v{vLane}", f"v_mov_b32 v{vFl}, {OOR:#x}",
        f"s_add_u32 s{sA}, s{sR}, s{sBase}", f"v_cndmask_b32 v{vPo}, v{vFl}, v{vPo}, vcc", f"s_lshl3_add_u32 s{sWo}, s{sA}, s{sK}", f"v_mov_b32 v{vFl}, 0", m0(0)]
    role3 = role3[:-1]
    ex = {u: [[] for _ in range(32)] for u in range(58, 64)}
    spread(ex[58], [unpark(r) for r in park_early] + role1[:18], [1, 2, 4, 5, 6, 7, 8, 9, 11, 13, 14, 15, 17, 18, 19, 20, 21, 23, 24, 25, 26, 27])
    spread(ex[59], role1[18:], [1, 2, 4, 5, 6, 7, 9, 11, 13, 14, 15, 17, 19, 21, 23, 25, 27])
    spread(ex[60], role2 + role3, [0, 1, 2, 3, 4, 5, 6, 7, 8, 9, 10, 11, 14] + [15, 17, 18, 19, 20, 21, 22, 23, 24, 25, 26, 27, 28, 29])
    spread(ex[61], role4, [1, 3, 5, 6, 7, 8, 9, 10, 11, 14, 18, 25])
    pro = []
    for j in range(AHEAD):
        ad = adv(j + 1)
        pro.append([dma(j, i, rAE) for i in range(4)] + [ad[0], m0(j + 1)] + ad[1:])
    spread(ex[62], pro[0] + pro[1], [1, 2, 5, 9, 14, 15, 16, 17, 18, 19, 20, 21, 22, 23, 24, 25, 26, 27])
    spread(ex[63], [unpark(r) for r in park_late], list(range(16, 27)))
    stamp(p, 12)
    for u in range(58, 64):
        if u == 62: stamp(p, 13)
        slot(u, extra=ex[u])
    for f in range(3, 8):
        for hf in range(2): p(v_read(63, f, hf))
    p(l_adds(63))
    mp = pv_mf(63)
    p(WL("vf63_0"))
    rest = sum(pro[2:], [])
    for i in range(16):
        if i == 8: p(WL("vf63_1"))
        p(mp[i])
        n = 3 if i < 4 else 2
        p(rest[:n]); rest = rest[n:]
    assert not rest
    stamp(p, 4)
    for q in range(2):
        p(f"v_mov_b32 v16, v{vL[q]}")
        p("s_nop 1")
        p(f"v_permlane32_swap_b32 v{vL[q]}, v16")
        p(f"v_add_f32 v{vL[q]}, v{vL[q]}, v16")
        p(f"v_rcp_f32 v{vL[q]}, v{vL[q]}")
    p(f"""v_bfe_u32 v16, v{vLane}, 4, 1
    v_bfe_u32 v17, v{vLane}, 5, 1
    v_and_b32 v18, 15, v{vLane}
    v_lshlrev_b32 v18, 4, v18
    v_lshl_add_u32 v18, v16, 9, v18
    v_lshl_add_u32 v{vSt}, v17, 8, v18
    s_nop 4""")
    k = 0
    for db in range(4):
        if db: p(f"s_add_u32 s{sOo}, s{sOo}, 8192")
        for q in range(2):
            b = 16 + (k % 2) * 32; k += 1
            for r in range(16): p(f"v_accvgpr_read_b32 v{b+r}, a{O(db,q)+r}")
            for r in range(0, 16, 2): p(f"v_pk_mul_f32 {v(b+r,2)}, {v(b+r,2)}, {v(vL[0],2)} op_sel:[0,{q}] op_sel_hi:[1,{q}]")
            dst = {0: 0, 1: 1, 4: 2, 5: 3, 2: 4, 3: 5, 6: 6, 7: 7}
            for c in range(8): p(f"v_cvt_pk_bf16_f32 v{b+16+dst[c]}, v{b+2*c}, v{b+2*c+1}")
            p("s_nop 0")
            for c in range(4): p(f"v_permlane16_swap_b32 v{b+16+c}, v{b+20+c}")
            p(VM("ost", f"buffer_store_dwordx4 {v(b+16,4)}, v{vSt}, s[{rWS}:{rWS+3}], s{sOo} offen offset:{2*q*1024} sc1"))
            p(VM("ost", f"buffer_store_dwordx4 {v(b+20,4)}, v{vSt}, s[{rWS}:{rWS+3}], s{sOo} offen offset:{(2*q+1)*1024} sc1"))
    stamp(p, 5)

    def b_read(j, i):
        hi, o = divmod(ring(j) * 16384, 65536)
        return DS(f"b{j}", f"ds_read_b128 {v(BF(j % 2, i), 4)}, v{cA[hi]} offset:{o + (i // 2) * 4096 + (i % 2) * 1024}")
    def a_read(j, i, half):
        hi, o = divmod(ring(j) * 16384, 65536)
        return DS(f"a{j}_{i}", f"ds_read_b64_tr_b16 {v(AF(j % 2, i) + 2 * half, 2)}, v{cT[hi][i]} offset:{o + half * 8192}")
    def g_load(k): return VM("g", f"buffer_load_dwordx4 {v(GR + 4 * k, 4)}, v{cGo}, s[{rAct}:{rAct+3}], s{sGl} offen offset:{(k % 4)*1024} sc1")
    def step(j, loop_tail=None):
        mf = [f"{M16} {v(acc(nb, rb), 4)}, {v(AF(j % 2, nb), 4)}, {v(BF(j % 2, rb), 4)}, {'0' if j == 0 else v(acc(nb, rb), 4)}" for nb in range(4) for rb in range(4)]
        sal = [[] for _ in range(16)]; g = [[] for _ in range(16)]
        g[1].append(a_read(j, 3, 0)); g[2].append(a_read(j, 3, 1))
        if j + 1 < NS:
            for i, gp in enumerate((3, 5, 6, 7)): g[gp].append(b_read(j + 1, i))
            for i, gp in enumerate((9, 10, 11, 13, 14, 15)): g[gp].append(a_read(j + 1, i // 2, i % 2))
        if j + AHEAD < NS:
            for i in range(4): g[4 * i].append(dma(j + AHEAD, i))
        elif j in (122, 123):
            if j == 123: sal[0].append(f"s_add_u32 s{sGl}, s{sGl}, 4096")
            for k in range(4): g[4 * k].append(g_load(4 * (j - 122) + k))
        if j % 8 == 1 and j + 1 + AHEAD <= NS:
            sal[1].append(f"s_add_u32 s{sWin}, s{sWin}, 1"); sal[2].append(f"v_readlane_b32 s{sBase}, v{vTbl}, s{sWin}")
            sal[4].append(mask_next)
            if j > 1: sal[8].append(WV("poll"))
            sal[8].append(flag_cmp); sal[12].append(flag_test)
        if j % 8 == 4 and j < 122: g[13].append(poll())
        if j + 1 + AHEAD <= NS:
            for x, gp in zip(adv(j + 1 + AHEAD), (5, 6, 9, 10)): sal[gp].append(x)
            sal[14].append(m0(j + 1 + AHEAD))
        sal[3].append(WL(f"a{j}_1")); sal[7].append(WL(f"a{j}_2")); sal[11].append(WL(f"a{j}_3"))
        post = []
        if j + 1 < NS:
            sal[15].append(WL(f"a{j+1}_0"))
            if j % 2 == 0 and j + 2 < NS:
                post.append(WV(f"d{j+2}", f"d{j+3}") if j + 3 < NS else WV(f"d{j+2}"))
                post.append("s_barrier")
        if loop_tail: post.append(loop_tail)
        g[15].extend(post)
        p.block(mf, [x + y for x, y in zip(sal, g)])
    def first2():
        p(WV("d0", "d1")); p("s_barrier")
        stamp(p, 6)
        for i in range(4): p(b_read(0, i))
        for i in range(3): p(a_read(0, i, 0)); p(a_read(0, i, 1))
        p(WL("a0_0"))
        step(0); step(1)
    if PROF: p(f"s_mov_b32 s{sCnt}, 14")
    p(f"s_cmp_lg_u32 s{sTy}, 0"); p("s_cbranch_scc1 L_c_late")
    vm0, ds0 = list(p.vm), list(p.ds)
    first2()
    p(WV("ost")); p(publish()); p("s_branch L_c_loop")
    p.vm, p.ds = vm0, ds0
    p("L_c_late:")
    p(poll())
    def x_loads():
        for rb in range(4):
            p(f"s_add_u32 s4, s{sXt}, {rb * 16 * 2048}")
            for nb in range(4): p(VM("x", f"buffer_load_dwordx2 {v(XR + (nb * 4 + rb) * 2, 2)}, v{cXo}, s[{rX}:{rX+3}], s4 offen offset:{nb*32}"))
    if "xearly" in opt: x_loads()
    p(WV("poll")); p(publish())
    stamp(p, 10)
    if "allpoll" not in opt:
        p(f"s_cmp_lg_u32 s{sW}, 0"); p("s_cbranch_scc1 L_spun_0")
    p(flag_cmp); p("s_nop 0"); p(flag_test); p("s_cbranch_scc1 L_spin_0 ; scc=flag"); p("L_spun_0:")
    if "allpoll" not in opt: p("s_barrier")
    stamp(p, 11)
    for j in range(AHEAD):
        p(m0(j)); p(f"s_add_u32 s4, s{sR0}, s{sBase}")
        p(dma(j, 2, so=4)); p(dma(j, 3, so=4))
        p(f"s_add_u32 s{sR0}, s{sR0}, 8192"); p(f"s_and_b32 s{sR0}, s{sR0}, {7*8192:#x}")
    p(m0(AHEAD))
    if "xearly" not in opt: x_loads()
    first2()
    p("s_cbranch_scc1 L_spin_l ; scc=flag")
    def body(it):
        p(tr_a())
        for q in range(8):
            if q == 6 and PROF: p(tr_b(sCnt, 40, vLane)); p(f"s_sub_u32 s{sCnt}, s{sCnt}, 1")
            step(2 + 8 * it + q, "s_cbranch_scc0 L_c_loop ; scc=flag" if q == 7 else None)
    p.loop(15, body, "L_c_loop", None)
    p(f"s_lshl1_add_u32 s4, s{sTy}, 14"); p(f"s_cmp_lg_u32 s{sWin}, s4"); p("s_cbranch_scc1 L_spin_l")
    for j in range(122, 128): step(j)
    p("s_nop 7")
    stamp(p, 7)
    p(f"s_cmp_lg_u32 s{sTy}, 0")
    p("s_cbranch_scc1 L_c_s")
    p(f"s_mov_b32 s4, {f32(-1.4426950408889634):#x}"); p("s_mov_b32 s5, s4")
    p("s_mov_b32 s6, 1.0"); p("s_mov_b32 s7, 1.0")
    k = 0
    for rb in range(4):
        for np_ in range(2):
            b = 16 + (k % 2) * 8
            src = [acc(2 * np_ + e // 2, rb) + 2 * (e % 2) for e in range(4)]
            for e in range(4): p(f"v_pk_mul_f32 {v(b+2*e,2)}, {v(src[e],2)}, s[4:5]")
            for e in range(8): p(f"v_exp_f32 v{b+e}, v{b+e}")
            for e in range(4): p(f"v_pk_add_f32 {v(b+2*e,2)}, {v(b+2*e,2)}, s[6:7]")
            for e in range(8): p(f"v_rcp_f32 v{b+e}, v{b+e}")
            for e in range(4): p(f"v_pk_mul_f32 {v(b+2*e,2)}, {v(b+2*e,2)}, {v(src[e],2)}")
            for e in range(4): p(f"v_cvt_pk_bf16_f32 v{b+e}, v{b+2*e}, v{b+2*e+1}")
            for e in range(4): p(f"v_min_u32 v{b+e}, -2, v{b+e}")
            if k == 4: p(f"s_add_u32 s{sG}, s{sG}, 4096")
            p(VM("g", f"buffer_store_dwordx4 {v(b,4)}, v{cGo}, s[{rAct}:{rAct+3}], s{sG} offen offset:{(k % 4)*1024} sc1"))
            k += 1
    stamp(p, 8)
    prof_out(p, 1, 9, rWS, sTy)
    p("s_endpgm")
    p("L_c_s:")
    p("s_mov_b32 s6, 0x100000")
    p("L_c_chk:")
    p("s_waitcnt vmcnt(0)")
    p(f"v_max3_u32 v16, v{GR}, v{GR+1}, v{GR+2}")
    p(f"v_max3_u32 v17, v{GR+3}, v{GR+4}, v{GR+5}")
    for i in range(6, 30, 4):
        p(f"v_max3_u32 v16, v{GR+i}, v{GR+i+1}, v16"); p(f"v_max3_u32 v17, v{GR+i+2}, v{GR+i+3}, v17")
    p(f"v_max3_u32 v16, v{GR+30}, v{GR+31}, v16")
    p("v_max_u32 v16, v16, v17")
    p("v_cmp_eq_u32 vcc, -1, v16")
    p("s_cbranch_vccz L_c_go")
    p("s_sub_u32 s6, s6, 1")
    p("s_cbranch_scc1 L_c_go")
    p(f"s_mov_b32 s{sGl}, s{sG}")
    for k in range(8):
        if k == 4: p(f"s_add_u32 s{sGl}, s{sGl}, 4096")
        p(g_load(k))
    p("s_branch L_c_chk")
    p("L_c_go:")
    stamp(p, 8)
    k = 0
    for rb in range(4):
        p(f"s_add_u32 s4, s{sXt}, {rb * 16 * 2048}")
        for np_ in range(2):
            b = 16 + (k % 2) * 16
            for e in range(4):
                gr = GR + 4 * k + e
                xr = XR + ((2 * np_ + e // 2) * 4 + rb) * 2 + e % 2
                p(f"v_lshlrev_b32 v{b+2*e}, 16, v{gr}")
                p(f"v_and_b32 v{b+2*e+1}, 0xffff0000, v{gr}")
                p(f"v_lshlrev_b32 v{b+8+2*e}, 16, v{xr}")
                p(f"v_and_b32 v{b+8+2*e+1}, 0xffff0000, v{xr}")
            for e in range(4):
                src = acc(2 * np_ + e // 2, rb) + 2 * (e % 2)
                p(f"v_pk_fma_f32 {v(b+2*e,2)}, {v(src,2)}, {v(b+2*e,2)}, {v(b+8+2*e,2)}")
            for e in range(4): p(f"v_cvt_pk_bf16_f32 v{b+e}, v{b+2*e}, v{b+2*e+1}")
            p("s_nop 0")
            p(f"v_permlane16_swap_b32 v{b}, v{b+2}"); p(f"v_permlane16_swap_b32 v{b+1}, v{b+3}")
            p(VM("o", f"buffer_store_dwordx4 {v(b,4)}, v{cOo}, s[{rOut}:{rOut+3}], s4 offen offset:{np_*64}"))
            k += 1
    prof_out(p, 1, 9, rWS, sTy)
    p("L_end:")
    p("s_endpgm")
    errs = check(p.trace, "main") + scc_check(p.trace, "main")

    p.trace = []
    for site, back in (("0", "L_spun_0"), ("l", "L_c_loop")):
        p(f"L_spin_{site}:"); p("s_mov_b32 s7, 0x100000")
        p(f"L_spin2_{site}:")
        if "back" in opt:
            for i in range(8): p("s_nop 15")
        p(poll().text); p("s_waitcnt vmcnt(0)"); p(flag_cmp); p("s_nop 0"); p(flag_test); p(f"s_cbranch_scc0 {back} ; scc=flag")
        p("s_sub_u32 s7, s7, 1"); p(f"s_cbranch_scc0 L_spin2_{site}"); p(f"s_branch {back}")
    p("L_cnt_wait:"); p("s_mov_b32 s7, 0x100000")
    p("L_cnt_wait2:"); p(cnt_load); p("s_waitcnt vmcnt(0)"); p(cnt_test); p("s_cbranch_scc1 L_cnt_ok")
    p("s_sub_u32 s7, s7, 1"); p("s_cbranch_scc0 L_cnt_wait2"); p("s_branch L_cnt_ok")
    p("L_hook:")
    p.c("H, the g fill and the flag reset of every wave of this workgroup have reached memory: wave 0 counts the workgroup in")
    p(f"s_and_b32 s4, s2, 7"); p("s_lshl_b32 s4, s4, 2"); p(f"s_cmp_eq_u32 s{sW}, 0"); p(f"s_cselect_b32 s4, s4, {OOR:#x}")
    p(f"s_mov_b32 s{sHook}, 1"); p(f"s_mov_b32 s{sCnt}, 12")
    p(f"buffer_atomic_add v{vOne}, v{vZ}, s[{rDbg}:{rDbg+3}], s4 offen sc1")
    p("s_branch L_att")
    errs += check(p.trace, "hooks") + scc_check(p.trace, "hooks")
    for par in range(2):
        p.trace = []
        p.label(f"L_rare_{par}")
        p("s_nop 15")
        for q in range(2):
            rowmax(par, q, 16, 17)
            p("v_max_f32 v16, 0, v16")
            p("v_sub_f32 v17, 0, v16")
            p("v_exp_f32 v17, v17")
            for i in range(16):
                p(f"v_sub_f32 v{S(par,q)+i}, v{S(par,q)+i}, v16")
                p(f"v_sub_f32 v{S(1-par,q)+i}, v{S(1-par,q)+i}, v16")
                p(f"v_sub_f32 v{NM(q)+i}, v{NM(q)+i}, v16")
            p(f"v_mul_f32 v{vL[q]}, v{vL[q]}, v17")
            for db in range(4):
                for r in range(0, 16, 4):
                    for e in range(4): p(f"v_accvgpr_read_b32 v{20+e}, a{O(db,q)+r+e}")
                    for e in range(4): p(f"v_mul_f32 v{20+e}, v{20+e}, v17")
                    for e in range(4): p(f"v_accvgpr_write_b32 a{O(db,q)+r+e}, v{20+e}")
            for hb in range(2):
                for i in range(8): p(f"v_exp_f32 v{24+i}, v{S(par,q)+8*hb+i}")
                p("s_nop 0")
                if hb == 0: p(f"v_add_f32 v{vLu[par][q]}, v24, v25")
                for i in range(2 if hb == 0 else 0, 8): p(f"v_add_f32 v{vLu[par][q]}, v{vLu[par][q]}, v{24+i}")
                for i in range(4): p(f"v_cvt_pk_bf16_f32 v{P(par, hb, q) + i}, v{24+2*i}, v{25+2*i}")
        for gp, pri, txt in sm_items(par + 1):
            if gp < 0: p(txt); p("s_nop 0")
        mine = [(i, x) for i, x in enumerate(rare_sites) if x[1] == par]
        for i, (lab, _, lt) in mine:
            if lt: continue
            p(f"s_cmp_eq_u32 s{sSite}, {i}"); p(f"s_cbranch_scc1 L_back_{lab}")
        lts = [x for _, x in mine if x[2]]
        if lts:
            p(f"s_cmp_eq_u32 s{sCnt}, -1"); p(f"s_branch L_back_{lts[0][0]}")
        else:
            p("s_endpgm")
        errs += check(p.trace, f"rare{par}")
    p.trace = []
    return p, desc("main_kernel", 512, 102, 256), errs

def main(fn, opt=()):
    global PROF
    PROF = "prof" in opt
    pl, dl = gen_ln(opt)
    pa, da, ea = gen_main(opt)
    errs = check(pl.trace, "ln") + ea
    for e in errs[:40]: print("HAZARD", e)
    hdr = open("cdna_kernels/" + KN + ".s.ref").read().split("; Override")[0]
    hdr += "; @launch kernel=ln_kernel grid=(256,1,1) block=(512,1,1) lds=0\n"
    hdr += "; @launch kernel=main_kernel grid=(256,1,1) block=(256,1,1) lds=131072\n"
    hdr += '.amdgcn_target "amdgcn-amd-amdhsa--gfx950"\n.text\n'
    s = hdr + pl.text() + pa.text() + '.section .rodata,"a"\n' + "".join(".p2align 6\n" + d for d in (dl, da))
    open(fn, "w").write(s)
    print(f"wrote {fn}: {len(s)} bytes, hazards: {len(errs)}")

if __name__ == "__main__":
    main(sys.argv[1] if len(sys.argv) > 1 else "k.s", sys.argv[2:])
```

```python
import sys, struct
from fw import *

KN = "recurrent_scan__mha_block_cached__dense_activation_relu__prompt"
XN_BASE = 0x0
H_BASE = 0x400000
O_BASE = 0x1200000
G_BASE = 0x2200000
FLAG_BASE = 0x2600000
XFLAG_BASE = 0x2610000
WS_BYTES = 0x10000000
OOR = 0x40000000
def f32(x): return struct.unpack("<I", struct.pack("<f", x))[0]
QSCALE = f32(128 ** -0.5 * 1.4426950408889634)

def v(b, n=1): return f"v{b}" if n == 1 else f"v[{b}:{b+n-1}]"
def a_(b, n=1): return f"a{b}" if n == 1 else f"a[{b}:{b+n-1}]"

def begin(p, name):
    p.raw(f".globl {name}"); p.raw(".p2align 8"); p.raw(f".type {name},@function"); p.raw(f"{name}:")
def desc(name, vgpr, sgpr, accum):
    return f""".amdhsa_kernel {name}
  .amdhsa_next_free_vgpr {vgpr}
  .amdhsa_next_free_sgpr {sgpr}
  .amdhsa_accum_offset {accum}
  .amdhsa_group_segment_fixed_size 0
  .amdhsa_kernarg_size 88
  .amdhsa_user_sgpr_count 2
  .amdhsa_user_sgpr_kernarg_segment_ptr 1
  .amdhsa_system_sgpr_workgroup_id_x 1
  .amdhsa_float_denorm_mode_32 3
.end_amdhsa_kernel
"""
def srd(p, d, b, nbytes, off_sgpr=None):
    if off_sgpr is None:
        p(f"s_mov_b32 s{d}, s{b}")
        p(f"s_and_b32 s{d+1}, s{b+1}, 0xffff")
        p(f"s_mov_b32 s{d+2}, {nbytes:#x}")
    else:
        p(f"s_add_u32 s{d}, s{b}, s{off_sgpr}")
        p(f"s_addc_u32 s{d+1}, s{b+1}, 0")
        p(f"s_and_b32 s{d+1}, s{d+1}, 0xffff")
        p(f"s_sub_u32 s{d+2}, {nbytes:#x}, s{off_sgpr}")
    p(f"s_mov_b32 s{d+3}, 0x20000")

PROF_BASE = 0x2700000
PROF = False
vP = 97
def stamp(p, i):
    if PROF:
        p("s_memrealtime s[92:93]"); p("s_memtime s[94:95]"); p("s_waitcnt lgkmcnt(0)")
        p(f"v_writelane_b32 v{vP}, s92, {2*i}"); p(f"v_writelane_b32 v{vP}, s94, {2*i+1}")
def tr_a(): return ["s_memrealtime s[96:97]", "s_memtime s[98:99]"] if PROF else []
def tr_b(cnt, add, vl, va=98, vt=96):
    return [f"s_add_u32 s93, s{cnt}, {add}", f"v_cmp_eq_u32 vcc, s93, v{vl}", f"v_mov_b32 v{vt}, s96", "s_nop 0", f"v_cndmask_b32 v{va}, v{va}, v{vt}, vcc",
            f"v_mov_b32 v{vt}, s98", f"v_cndmask_b32 v{va+1}, v{va+1}, v{vt}, vcc"] if PROF else []
def prof_out(p, kidx, last, srd, extra=None):
    if PROF:
        p("s_waitcnt vmcnt(0)"); stamp(p, last)
        if extra is not None: p(f"v_writelane_b32 v{vP}, s{extra}, 62")
        p("s_getreg_b32 s92, hwreg(HW_REG_XCC_ID)"); p(f"v_writelane_b32 v{vP}, s92, 60")
        p("s_getreg_b32 s92, hwreg(HW_REG_HW_ID)"); p(f"v_writelane_b32 v{vP}, s92, 61")
        p(f"s_lshl_b32 s92, s2, 11"); p(f"s_add_u32 s92, s92, {PROF_BASE + 0x100000 + kidx * 0x80000:#x}")
        p(f"v_lshlrev_b32 v96, 3, v0")
        p(f"buffer_store_dwordx2 v[98:99], v96, s[{srd}:{srd+3}], s92 offen")
        p(f"s_lshl_b32 s92, s2, 10"); p(f"s_add_u32 s92, s92, {PROF_BASE + kidx * 0x40000:#x}")
        p(f"v_lshlrev_b32 v96, 2, v0"); p("v_and_b32 v96, 0x3ff, v96")
        p(f"buffer_store_dword v{vP}, v96, s[{srd}:{srd+3}], s92 offen")

def wave_sum(p, r):
    for sh in (1, 2, 4, 8):
        p("s_nop 1"); p(f"v_add_f32_dpp v{r}, v{r}, v{r} row_shr:{sh} row_mask:0xf bank_mask:0xf bound_ctrl:0")
    p("s_nop 1"); p(f"v_add_f32_dpp v{r}, v{r}, v{r} row_bcast:15 row_mask:0xa bank_mask:0xf")
    p("s_nop 1"); p(f"v_add_f32_dpp v{r}, v{r}, v{r} row_bcast:31 row_mask:0xc bank_mask:0xf")

def gen_ln(opt):
    p = Prog(); begin(p, "ln_kernel")
    p.c("LayerNorm (no affine), one row per wave; writes xn in MFMA-fragment order")
    p("""s_cmp_ge_u32 s2, 256
    s_cbranch_scc1 L_ln_end""")
    stamp(p, 0)
    p("""s_load_dwordx2 s[4:5], s[0:1], 0
    s_load_dwordx2 s[6:7], s[0:1], 80
    v_lshrrev_b32 v1, 6, v0
    v_and_b32 v2, 63, v0
    s_lshl_b32 s3, s2, 3
    v_add_u32 v3, s3, v1
    v_lshlrev_b32 v12, 11, v3
    v_lshrrev_b32 v13, 2, v2
    v_and_b32 v14, 3, v2
    v_lshl_add_u32 v12, v13, 6, v12
    v_lshl_add_u32 v12, v14, 3, v12
    s_waitcnt lgkmcnt(0)""")
    srd(p, 8, 4, 2048 * 1024 * 2)
    srd(p, 12, 6, WS_BYTES)
    p(VM("x", "buffer_load_dwordx2 v[4:5], v12, s[8:11], 0 offen"))
    p(VM("x", "buffer_load_dwordx2 v[6:7], v12, s[8:11], 0 offen offset:32"))
    p(VM("x", "buffer_load_dwordx2 v[8:9], v12, s[8:11], 0 offen offset:1024"))
    p(VM("x", "buffer_load_dwordx2 v[10:11], v12, s[8:11], 0 offen offset:1056"))
    p.c("output offset: t*524288 + kstep*16384 + qb16*1024 + g*256 + (row%16)*16")
    p("""v_lshrrev_b32 v15, 8, v3
    v_lshlrev_b32 v15, 19, v15
    v_lshl_add_u32 v15, v13, 14, v15
    v_bfe_u32 v32, v3, 4, 4
    v_lshl_add_u32 v15, v32, 10, v15
    v_lshl_add_u32 v15, v14, 8, v15
    v_and_b32 v32, 15, v3
    v_lshl_add_u32 v15, v32, 4, v15
    s_mov_b32 s16, 0x40000""")
    p(WV("x"))
    for i in range(8):
        p(f"v_lshlrev_b32 v{16+2*i}, 16, v{4+i}")
        p(f"v_and_b32 v{17+2*i}, 0xffff0000, v{4+i}")
    p("v_add_f32 v32, v16, v17")
    for i in range(18, 32): p(f"v_add_f32 v32, v32, v{i}")
    wave_sum(p, 32)
    p("""s_nop 0
    v_readlane_b32 s20, v32, 63
    s_nop 1
    v_mov_b32 v33, s20
    v_mul_f32 v33, 0x3a800000, v33""")
    p("v_sub_f32 v34, v16, v33"); p("v_mul_f32 v32, v34, v34")
    for i in range(17, 32):
        p(f"v_sub_f32 v34, v{i}, v33"); p("v_fmac_f32 v32, v34, v34")
    wave_sum(p, 32)
    p("""s_nop 0
    v_readlane_b32 s20, v32, 63
    s_nop 1
    v_mov_b32 v34, s20
    v_mul_f32 v34, 0x3a800000, v34
    v_cvt_pk_bf16_f32 v33, v33, v34
    v_and_b32 v34, 0xffff0000, v33
    v_lshlrev_b32 v33, 16, v33""")
    p(f"v_add_f32 v34, {f32(1e-5):#x}, v34")
    p("""v_cvt_pk_bf16_f32 v34, v34, v34
    v_lshlrev_b32 v34, 16, v34
    v_sqrt_f32 v34, v34
    s_nop 0
    v_cvt_pk_bf16_f32 v34, v34, v34
    v_lshlrev_b32 v34, 16, v34
    v_rcp_f32 v34, v34""")
    for i in range(8):
        p(f"v_sub_f32 v{16+2*i}, v{16+2*i}, v33")
        p(f"v_sub_f32 v{17+2*i}, v{17+2*i}, v33")
        p(f"v_cvt_pk_bf16_f32 v35, v{16+2*i}, v{17+2*i}")
        p(f"v_lshlrev_b32 v{16+2*i}, 16, v35")
        p(f"v_and_b32 v{17+2*i}, 0xffff0000, v35")
        p(f"v_mul_f32 v{16+2*i}, v{16+2*i}, v34")
        p(f"v_mul_f32 v{17+2*i}, v{17+2*i}, v34")
        p(f"v_cvt_pk_bf16_f32 v{4+i}, v{16+2*i}, v{17+2*i}")
    p("buffer_store_dwordx4 v[4:7], v15, s[12:15], 0 offen")
    p("buffer_store_dwordx4 v[8:11], v15, s[12:15], s16 offen")
    prof_out(p, 0, 1, 12)
    p("L_ln_end:")
    p("s_endpgm")
    return p, desc("ln_kernel", 104 if PROF else 40, 102, 104 if PROF else 40)

M16 = "v_mfma_f32_16x16x32_bf16"
M32 = "v_mfma_f32_32x32x16_bf16"
def spread(dst, items, gaps):
    assert len(items) <= len(gaps), (len(items), len(gaps))
    for x, g in zip(items, gaps): dst[g].append(x)

def gen_main(opt):
    LNK = "lnk" in opt
    name = "main_kernel" if LNK else KN + "_kernel"
    p = Prog(); begin(p, name)
    vX = 1; vWd = [2, 3, 4, 5]; vLane = 6; vTmp = 7
    vT = list(range(8, 16)); WF = 16; XF = 32
    vK = list(range(100, 108)); vV = list(range(108, 112)); vKd = [112, 113]; vVd = 114; vSt = 115; vPf = 115
    ET = 116; vL = [124, 125]; vLu = [[126, 127], [18, 19]]
    def S(par, q): return 128 + 32 * par + 16 * q
    def P(par, t, q): return 192 + 16 * par + 8 * t + 4 * q
    def NM(q): return 224 + 16 * q
    def accQ(d, qb): return 128 + (d * 4 + qb) * 4
    def accH(i, qb): return (i * 4 + qb) * 4
    def O(db, q): return (db * 2 + q) * 16
    def QF(q, s): return 32 + (q * 8 + s) * 4
    def KF(s): return 192 + 4 * s
    def VF(f): return 224 + 4 * f
    sW = 3; rXN = 8; rWq = 12; rW1 = 16; rK = 20; rV = 24; rWS = 28
    sX = 36; sWq = 37; sW1 = 38; sCnt = 39; sKV = 40; sM1 = 41; sMK = 42; sMV = 43; sThr = 44; sH = 45; sT = 46
    sHo = 47; sHs = 48; sOo = 49; sVo = 50; sSite = 51; sPo = 66; sP2 = 67; sKK = 32; sJ = 33; sRo = 34; sRx = 35; sXb = 68; sFill = 69
    sHook = 70; sOwn = 71; rX = 72; rOut = 76; rDbg = 80
    PH1 = 65536; VRING = 32768
    cWd = [4, 5]; cAd = 1; vDb = 2; vTbl = 3; vFl = 8; vPo = 9; vZ = 10; vOne = 11; vExp = 12; cXo = 13; cGo = 14; cOo = 15; vPfD = cOo
    cA = [100, 101]; cT = [[102, 103, 104, 105], [106, 107, 112, 113]]
    PARK = 128
    park_early = cWd + [cAd, cXo]
    park_late = cA + cT[0] + cT[1] + [cOo]
    def AF(buf, nb): return 16 + buf * 16 + nb * 4
    def BF(buf, rb): return 48 + buf * 16 + rb * 4
    XR = 224; GR = 192
    def acc(nb, rb): return 128 + (nb * 4 + rb) * 4
    rW = 12; rAE = 8; rAct = rWS
    sA = 32; sWo = 33; sBase = 34; sK = 35; sR = 36; sAn = 37; sG = 38; sTy = 41; sGl = 47; sXo = 48; sWin = 68; sB0 = 69
    sFl = 100; sXt = 101; sMask = 66; sR0 = 16; sM = 52

    p.c("[Q | relu(H)] = xn @ [Wq_h | W1 slice], flash attention for (head h, 256 query rows), then one 128x128 tile of")
    p.c("g = silu(H @ W2) or of out = x + (O @ Wo) * g")
    p("""s_cmp_ge_u32 s2, 256
    s_cbranch_scc1 L_end""")
    stamp(p, 0)
    if not LNK: p("s_memrealtime s[66:67]")
    p("""s_load_dwordx2 s[72:73], s[0:1], 0
    s_load_dwordx4 s[76:79], s[0:1], 64
    s_load_dwordx4 s[52:55], s[0:1], 8
    s_load_dwordx2 s[56:57], s[0:1], 24
    s_load_dwordx2 s[58:59], s[0:1], 48
    s_load_dwordx2 s[60:61], s[0:1], 80
    s_load_dwordx2 s[62:63], s[0:1], 32
    s_load_dwordx2 s[64:65], s[0:1], 56
    v_lshrrev_b32 v7, 6, v0
    v_and_b32 v6, 63, v0
    s_and_b32 s4, s2, 7
    s_lshr_b32 s5, s2, 3
    v_readfirstlane_b32 s3, v7
    s_lshl_b32 s45, s4, 2
    s_and_b32 s4, s5, 3
    s_add_u32 s45, s45, s4
    s_lshr_b32 s46, s5, 2""")
    p(f"s_lshl_b32 s4, s{sW}, 12")
    p(f"v_lshlrev_b32 v{vX}, 4, v{vLane}")
    p(f"v_mov_b32 v{vSt}, v{vX}")
    p(f"v_add_u32 v{vX}, s4, v{vX}")
    p(f"s_lshl_b32 s{sX}, s{sT}, 19")
    p(f"""v_lshrrev_b32 v20, 4, v{vLane}
    v_bfe_u32 v21, v{vLane}, 1, 3
    v_and_b32 v22, 1, v{vLane}
    s_lshl_b32 s4, s{sW}, 3
    s_and_b32 s5, s{sH}, 1
    s_movk_i32 s6, 7168""")
    for i in range(2):
        p(f"""v_add_u32 v23, {4*i}, v20
        v_xor_b32 v16, v21, v23
        v_add_u32 v23, s4, v23
        v_lshlrev_b32 v17, 13, v23
        v_lshl_add_u32 v17, v16, 5, v17
        v_lshl_add_u32 v{vWd[i]}, v22, 4, v17
        v_add_u32 v18, s5, v16
        v_cmp_eq_u32 vcc, 7, v18
        v_mul_lo_u32 v17, v23, s6
        s_nop 0
        v_cndmask_b32 v18, v18, 0, vcc
        v_cmp_eq_u32 vcc, 7, v16
        v_lshl_add_u32 v17, v18, 5, v17
        v_lshl_add_u32 v17, v22, 4, v17
        v_mov_b32 v18, {OOR:#x}
        v_cndmask_b32 v{vWd[2+i]}, v17, v18, vcc""")
    p(f"""s_lshl_b32 s{sMK}, s{sW}, 11
    s_add_u32 s{sM1}, s{sMK}, {PH1:#x}
    s_mov_b32 s{sXb}, s{sX}
    s_bfe_u32 s4, s2, 0x20003
    s_lshl_b32 s4, s4, 1
    s_add_u32 s{sRo}, s4, s{sT}
    s_and_b32 s4, s2, 3
    s_lshl_b32 s{sRx}, s4, 3
    s_mov_b32 s{sJ}, -1""")
    LX = 128; LU = 144; LT = 176; LN_ = 184
    if not LNK:
        p(f"s_lshl_b32 s4, s2, 14"); p(f"s_lshl_b32 s5, s{sW}, 12"); p("s_add_u32 s7, s4, s5")
    p("s_waitcnt lgkmcnt(0)")
    srd(p, rX, 72, 2048 * 2048)
    if not LNK:
        for i in range(4): p(VM("lx", f"buffer_load_dwordx4 {v(LX + 4 * i, 4)}, v{vSt}, s[{rX}:{rX+3}], s7 offen offset:{i*1024}"))
    srd(p, rDbg, 78, 256)
    if not LNK:
        p.c("the first workgroup of a row group picks the word that marks this launch's xn rows as written")
        p(f"""s_lshl_b32 s{sHook}, s{sT}, 3
        s_and_b32 s4, s2, 31
        s_or_b32 s4, s4, s{sW}
        s_cmp_lg_u32 s4, 0
        s_cbranch_scc1 L_no_nonce
        s_or_b32 s66, s66, 1
        v_mov_b32 v{LN_}, s66
        v_mov_b32 v{LN_+1}, s67
        s_mov_b64 exec, 1
        buffer_store_dwordx2 v[{LN_}:{LN_+1}], off, s[{rDbg}:{rDbg+3}], s{sHook} offset:64 sc1
        s_mov_b64 exec, -1
        L_no_nonce:""")
    srd(p, rXN, 60, WS_BYTES)
    p(f"s_lshl_b32 s4, s{sH}, 8"); srd(p, rWq, 56, 1024 * 4096 * 2, 4)
    p(f"s_mul_i32 s4, s{sH}, 224"); srd(p, rW1, 58, 1024 * 3584 * 2, 4)
    def x_load(j, b, so=sX):
        return VM(f"x{j}", f"buffer_load_dwordx4 {v(XF + (j % 4) * 16 + 4 * b, 4)}, v{vX}, s[{rXN}:{rXN+3}], s{so} offen offset:{b*1024}" + ("" if LNK else " sc1"))
    def w_m0(j, i):
        return f"s_add_u32 m0, s{sM1}, {(j % 4) * 16384 + (i >> 1) * 8192 + (i & 1) * 1024}"
    def w_dma(j, i):
        r, so = (rWq, sWq) if i < 2 else (rW1, sW1)
        return VM(f"w{j}", f"buffer_load_dwordx4 v{vWd[i]}, s[{r}:{r+3}], s{so} offen lds")
    def t_read(F, half):
        j, n = divmod(F, 15)
        part, u = divmod(n, 8)
        off = (j % 4) * 16384 + part * 8192 + half * 4096
        return DS(f"wf{F}", f"ds_read_b64_tr_b16 {v(WF + (F % 4) * 4 + 2 * half, 2)}, v{vT[u]} offset:{off}")
    def k_m0(u): return f"s_add_u32 m0, s{sMK}, {(u % 4) * 8192}"
    def v_m0(u): return f"s_add_u32 m0, s{sMV}, {(u % 4) * 8192}"
    def k_dma(u, i, so): return VM(f"k{u}", f"buffer_load_dwordx4 v{vKd[i]}, s[{rK}:{rK+3}], s{so} offen offset:{i*1024} lds")
    def v_dma(u, i, so): return VM(f"v{u}", f"buffer_load_dwordx4 v{vVd}, s[{rV}:{rV+3}], s{so} offen offset:{i*1024} lds")

    w_off = [f"s_lshl_b32 s{sWq}, s{sKK}, 18", f"s_mul_i32 s{sW1}, s{sKK}, {32*7168}"]
    kk_next = [f"s_add_u32 s{sJ}, s{sJ}, 1", f"s_add_u32 s4, s{sJ}, s{sRo}", "s_and_b32 s4, s4, 7", f"s_add_u32 s5, s{sJ}, s{sRx}", "s_and_b32 s5, s5, 24",
               f"s_or_b32 s{sKK}, s4, s5", f"s_lshl_b32 s{sX}, s{sKK}, 14", f"s_add_u32 s{sX}, s{sX}, s{sXb}"]
    p(kk_next)
    sX0 = [100, 101, sKV]
    if LNK:
        for j in range(3):
            for b in range(4): p(x_load(j, b))
            p(w_off); p(kk_next)
            for i in range(4 if j < 2 else 3):
                p(w_m0(j, i)); p("s_nop 0"); p(w_dma(j, i))
    else:
        for i in range(4): p(f"v_subrev_u32 v{24+i}, {16 * (8192 if i < 2 else 7168)}, v{vWd[i]}")
        for j in range(3):
            p(f"s_mov_b32 s{sX0[j]}, s{sX}"); p(w_off); p(kk_next)
            p(f"s_cmp_lt_u32 s{sW}, 2"); p(f"s_cbranch_scc1 L_now_{j}")
            for i in range(4 if j < 2 else 3):
                p(w_m0(j, i)); p("s_nop 0"); p(w_dma(j, i))
                p("s_sub_u32 m0, m0, 4096"); p("s_nop 0"); p(VM(f"w{j}", w_dma(j, i).text.replace(f"v{vWd[i]},", f"v{24+i},")))
            p(f"L_now_{j}:")
    p(f"""v_lshrrev_b32 v20, 2, v{vLane}
    v_and_b32 v21, 3, v{vLane}
    v_and_b32 v22, 7, v20
    v_lshlrev_b32 v23, 8, v20
    v_lshl_add_u32 v23, v22, 5, v23
    v_lshl_add_u32 v23, v21, 3, v23
    v_add_u32 v23, {PH1:#x}, v23""")
    for u in range(8): p(f"v_xor_b32 v{vT[u]}, {u*32}, v23")
    p(f"""v_and_b32 v20, 31, v{vLane}
    v_lshrrev_b32 v21, 5, v{vLane}
    v_and_b32 v22, 15, v{vLane}
    v_xor_b32 v21, v21, v22
    v_lshlrev_b32 v23, 8, v20
    v_lshl_add_u32 v23, v21, 4, v23""")
    for s in range(8): p(f"v_xor_b32 v{vK[s]}, {s*32}, v23")
    p(f"""v_lshrrev_b32 v20, 5, v{vLane}
    v_bfe_u32 v21, v{vLane}, 2, 2
    v_lshl_add_u32 v20, v20, 2, v21
    v_lshlrev_b32 v23, 8, v20
    v_lshl_add_u32 v23, v21, 6, v23
    v_bfe_u32 v20, v{vLane}, 4, 1
    v_lshl_add_u32 v23, v20, 5, v23
    v_and_b32 v20, 3, v{vLane}
    v_lshl_add_u32 v23, v20, 3, v23
    v_add_u32 v23, {VRING:#x}, v23""")
    for db in range(4): p(f"v_xor_b32 v{vV[db]}, {db*64}, v23")
    p(f"""v_lshrrev_b32 v20, 4, v{vLane}
    v_and_b32 v21, 15, v{vLane}
    s_lshl_b32 s4, s{sW}, 3
    v_add_u32 v20, s4, v20""")
    for i in range(2):
        p(f"""v_add_u32 v22, {4*i}, v20
        v_and_b32 v22, 15, v22
        v_xor_b32 v22, v22, v21
        v_lshlrev_b32 v23, 8, v20
        v_lshl_add_u32 v{vKd[i]}, v22, 4, v23""")
    p(f"""v_lshrrev_b32 v22, 4, v{vLane}
    v_bfe_u32 v21, v{vLane}, 2, 2
    v_xor_b32 v22, v22, v21
    v_lshlrev_b32 v23, 8, v20
    v_lshl_add_u32 v23, v22, 6, v23
    v_and_b32 v21, 3, v{vLane}
    v_lshl_add_u32 v{vVd}, v21, 4, v23""")
    p(f"""s_add_u32 s{sMV}, s{sMK}, {VRING:#x}
    s_mov_b32 s{sThr}, 0x45800000""")
    p(f"""s_lshl_b32 s4, s{sT}, 1
    s_lshr_b32 s5, s{sW}, 1
    s_add_u32 s4, s4, s5
    s_and_b32 s5, s{sW}, 1
    s_lshl_b32 s6, s4, 5
    s_add_u32 s6, s6, s{sH}
    s_lshl1_add_u32 s6, s6, s5
    s_lshl_b32 s6, s6, 1
    s_add_u32 s{sOwn}, s6, {FLAG_BASE:#x}
    s_lshl_b32 s5, s5, 12
    s_mul_i32 s6, s{sH}, 7
    s_add_u32 s6, s6, 1
    s_lshr_b32 s6, s6, 1
    s_mul_i32 s7, s4, 112
    s_add_u32 s7, s7, s6
    s_lshl_b32 s7, s7, 13
    s_add_u32 s7, s7, s5
    s_add_u32 s{sHo}, s7, {H_BASE:#x}
    s_and_b32 s6, s{sH}, 1
    s_cmp_eq_u32 s6, 0
    s_mov_b32 s6, {3*8192:#x}
    s_cselect_b32 s6, s6, {(-8192 + 8) & 0xffffffff:#x}
    s_add_u32 s{sHs}, s{sHo}, s6
    s_lshl_b32 s7, s4, 7
    s_lshl_b32 s6, s{sH}, 2
    s_add_u32 s7, s7, s6
    s_lshl_b32 s7, s7, 13
    s_add_u32 s7, s7, s5
    s_add_u32 s{sOo}, s7, {O_BASE:#x}""")
    srd(p, 84, 62, 4096 * 1024 * 2); srd(p, 88, 64, 3584 * 1024 * 2)
    p(f"""s_lshl_b32 s4, s2, 2
    s_add_u32 s4, s4, s{sW}
    s_lshl_b32 s{sPo}, s4, 13
    s_mul_i32 s{sP2}, s4, 7168""")
    srd(p, rWS, 60, WS_BYTES)
    p(f"s_lshl_b32 s4, s{sH}, 19"); srd(p, rK, 52, 32 * 2048 * 256, 4); srd(p, rV, 54, 32 * 2048 * 256, 4)
    srd(p, rOut, 76, 2048 * 2048)
    p(f"""s_lshl_b32 s4, s2, 14
    s_lshl_b32 s5, s{sW}, 12
    s_add_u32 s4, s4, s5
    s_add_u32 s{sFill}, s4, {G_BASE:#x}
    v_cmp_eq_u32 vcc, 0, v{vLane}
    v_mov_b32 v{ET+5}, {OOR:#x}
    v_mov_b32 v{ET+4}, 0
    v_cndmask_b32 v{ET+5}, v{ET+5}, 0, vcc""")
    for i in range(4): p(f"v_mov_b32 v{ET+i}, -1")
    for i in range(8): p(f"s_add_u32 s{sM+i}, s5, {i * 16384}")
    def park(r, src): p(f"v_accvgpr_write_b32 a{PARK + (park_early + park_late).index(r)}, v{src}")
    def unpark(r): return f"v_accvgpr_read_b32 v{r}, a{PARK + (park_early + park_late).index(r)}"
    p(f"""s_lshr_b32 s4, s{sW}, 1
    s_lshl_b32 s4, s4, 13
    s_add_u32 s4, s4, 2048
    v_add_u32 v20, s4, v{vSt}
    v_add_u32 v21, 0x10000, v20
    v_add_u32 v22, s{sMK}, v{vSt}""")
    park(cA[0], 20); park(cA[1], 21); park(cAd, 22)
    p(f"""v_lshrrev_b32 v16, 5, v{vLane}
    v_bfe_u32 v17, v{vLane}, 2, 3
    v_and_b32 v18, 3, v{vLane}
    v_lshlrev_b32 v19, 12, v16
    v_lshl_add_u32 v19, v17, 8, v19
    v_lshl_add_u32 v19, v17, 5, v19
    v_lshl_add_u32 v19, v18, 3, v19
    s_and_b32 s4, s{sW}, 1
    s_lshl_b32 s4, s4, 7
    v_xor_b32 v19, s4, v19""")
    for i in range(4):
        p(f"v_xor_b32 v20, {i*32}, v19"); p("v_add_u32 v21, 0x10000, v20")
        park(cT[0][i], 20); park(cT[1][i], 21)
    p(f"""v_lshrrev_b32 v16, 4, v{vLane}
    v_bfe_u32 v17, v{vLane}, 1, 3
    v_and_b32 v18, 1, v{vLane}
    s_lshl_b32 s4, s{sW}, 3""")
    for i in range(2):
        p(f"""v_add_u32 v19, {4*i}, v16
        v_xor_b32 v20, v17, v19
        v_add_u32 v19, s4, v19
        v_lshlrev_b32 v19, 11, v19
        v_lshl_add_u32 v19, v20, 5, v19
        v_lshl_add_u32 v19, v18, 4, v19
        v_subrev_u32 v19, {i*1024}, v19""")
        park(cWd[i], 19)
    p(f"""v_and_b32 v19, 15, v{vLane}
    v_lshlrev_b32 v19, 11, v19
    s_lshr_b32 s5, s{sW}, 1
    s_lshl_b32 s4, s5, 17
    s_and_b32 s5, s{sW}, 1
    s_lshl_b32 s5, s5, 7
    s_add_u32 s4, s4, s5
    v_add_u32 v19, s4, v19
    v_lshl_add_u32 v20, v16, 3, v19
    v_bfe_u32 v17, v{vLane}, 4, 1
    v_bfe_u32 v18, v{vLane}, 5, 1
    v_lshl_add_u32 v19, v17, 5, v19
    v_lshl_add_u32 v19, v18, 4, v19""")
    park(cXo, 20); park(cOo, 19)
    for i in range(112): p(f"v_accvgpr_write_b32 a{i}, 0")
    for i in range(192, 256): p(f"v_mov_b32 v{i}, 0")
    if not LNK:
        p(f"""v_lshrrev_b32 v20, 2, v{vLane}
        v_mul_u32_u24 v20, 528, v20
        v_and_b32 v21, 1, v{vLane}
        v_lshl_add_u32 v20, v21, 8, v20
        v_bfe_u32 v21, v{vLane}, 1, 1
        v_lshl_add_u32 v20, v21, 3, v20
        s_lshl_b32 s4, s{sW}, 5
        v_add_u32 v20, s4, v20
        v_lshrrev_b32 v21, 5, v{vLane}
        v_and_b32 v22, 31, v{vLane}
        v_lshlrev_b32 v22, 4, v22
        v_mul_u32_u24 v23, 528, v21
        v_add_u32 v22, v22, v23
        s_mul_i32 s4, s{sW}, {16 * 528}
        v_add_u32 v22, s4, v22
        v_bfe_u32 v23, v{vLane}, 3, 2
        v_lshlrev_b32 v23, 8, v23
        v_lshl_add_u32 v23, v21, 14, v23
        v_and_b32 v21, 7, v{vLane}
        v_lshl_add_u32 v23, v21, 4, v23
        v_lshlrev_b32 v21, 3, v{vLane}
        s_bfe_u32 s4, s2, 0x40001
        s_lshl_b32 s4, s4, 10
        s_and_b32 s5, s2, 1
        s_lshl_b32 s5, s5, 7
        s_add_u32 s4, s4, s5
        s_lshl_b32 s5, s{sW}, 18
        s_add_u32 s4, s4, s5
        s_add_u32 s6, s4, s{sXb}
        s_lshl_b32 s4, s2, 4
        s_lshl3_add_u32 s7, s{sW}, s4
        s_add_u32 s7, s7, {XFLAG_BASE:#x}
        s_cmp_lt_u32 s{sW}, 2
        s_cbranch_scc0 L_lx
        s_waitcnt vmcnt(0)
        L_lx:""")
        p(WV("lx"))
        stamp(p, 14)
        R = range(2)
        for i in range(8):
            for r in R:
                p(f"v_lshlrev_b32 v{LU+16*r+2*i}, 16, v{LX+8*r+i}"); p(f"v_and_b32 v{LU+16*r+2*i+1}, 0xffff0000, v{LX+8*r+i}")
        def wsum2(a, b):
            for sh, m in ((f"row_shr:{1}", "0xf"), ("row_shr:2", "0xf"), ("row_shr:4", "0xf"), ("row_shr:8", "0xf"), ("row_bcast:15", "0xa"), ("row_bcast:31", "0xc")):
                p("s_nop 0")
                for x in (a, b): p(f"v_add_f32_dpp v{x}, v{x}, v{x} {sh} row_mask:{m} bank_mask:0xf" + (" bound_ctrl:0" if "shr" in sh else ""))
        for r in R: p(f"v_pk_add_f32 {v(LT+2*r,2)}, {v(LU+16*r,2)}, {v(LU+16*r+2,2)}")
        for i in range(2, 8):
            for r in R: p(f"v_pk_add_f32 {v(LT+2*r,2)}, {v(LT+2*r,2)}, {v(LU+16*r+2*i,2)}")
        for r in R: p(f"v_add_f32 v{LT+2*r}, v{LT+2*r}, v{LT+2*r+1}")
        p("s_nop 0"); wsum2(LT, LT + 2)
        for r in R: p(f"v_mul_f32 v{LT+2*r}, 0xba800000, v{LT+2*r}")
        p("s_nop 0")
        for r in R: p(f"v_readlane_b32 s{(4, 50)[r]}, v{LT+2*r}, 63")
        p("s_nop 0"); p("s_mov_b32 s5, s4"); p("s_mov_b32 s51, s50")
        SM = ["s[4:5]", "s[50:51]"]
        for i in range(8):
            for r in R:
                p(f"v_pk_add_f32 {v(LT+4+2*r,2)}, {v(LU+16*r+2*i,2)}, {SM[r]}")
            for r in R:
                if i == 0: p(f"v_pk_mul_f32 {v(LT+2*r,2)}, {v(LT+4+2*r,2)}, {v(LT+4+2*r,2)}")
                else: p(f"v_pk_fma_f32 {v(LT+2*r,2)}, {v(LT+4+2*r,2)}, {v(LT+4+2*r,2)}, {v(LT+2*r,2)}")
        for r in R: p(f"v_add_f32 v{LT+2*r}, v{LT+2*r}, v{LT+2*r+1}")
        p("s_nop 0"); wsum2(LT, LT + 2)
        for r in R: p(f"v_mul_f32 v{LT+2*r}, 0x3a800000, v{LT+2*r}")
        for r in R: p(f"v_cvt_pk_bf16_f32 v{LT+2*r}, {('s4', 's50')[r]}, v{LT+2*r}")
        for r in R: p(f"v_lshlrev_b32 v{LT+2*r+1}, 16, v{LT+2*r}")
        for r in R: p(f"v_and_b32 v{LT+2*r}, 0xffff0000, v{LT+2*r}")
        for r in R: p(f"v_add_f32 v{LT+2*r}, {f32(1e-5):#x}, v{LT+2*r}")
        for op in ("cvt", "sh", "v_sqrt_f32", "cvt", "sh", "v_rcp_f32"):
            for r in R:
                x = LT + 2 * r
                p(f"v_cvt_pk_bf16_f32 v{x}, v{x}, v{x}" if op == "cvt" else f"v_lshlrev_b32 v{x}, 16, v{x}" if op == "sh" else f"{op} v{x}, v{x}")
        p("s_nop 0")
        for r in R: p(f"v_readlane_b32 s{(4, 50)[r]}, v{LT+2*r+1}, 63"); p(f"v_readlane_b32 s{(5, 51)[r]}, v{LT+2*r}, 63")
        p("s_nop 1")
        for i in range(8):
            for r in R: p(f"v_pk_add_f32 {v(LU+16*r+2*i,2)}, {v(LU+16*r+2*i,2)}, {SM[r]} op_sel_hi:[1,0]")
            for r in R: p(f"v_cvt_pk_bf16_f32 v{LT+4+r}, v{LU+16*r+2*i}, v{LU+16*r+2*i+1}")
            for r in R:
                p(f"v_lshlrev_b32 v{LU+16*r+2*i}, 16, v{LT+4+r}"); p(f"v_and_b32 v{LU+16*r+2*i+1}, 0xffff0000, v{LT+4+r}")
            for r in R: p(f"v_pk_mul_f32 {v(LU+16*r+2*i,2)}, {v(LU+16*r+2*i,2)}, {SM[r]} op_sel:[0,1] op_sel_hi:[1,1]")
            for r in R: p(f"v_cvt_pk_bf16_f32 v{LX+8*r+i}, v{LU+16*r+2*i}, v{LU+16*r+2*i+1}")
            if i % 2:
                for r in R: p(DS("lw", f"ds_write_b64 v20, {v(LX+8*r+i-1,2)} offset:{r*16 + (i // 4) * 16 * 528 + ((i // 2) % 2) * 128}"))
        p("s_waitcnt lgkmcnt(0)"); p("s_barrier")
        p(f"s_cmp_lt_u32 s{sW}, 2"); p("s_cbranch_scc0 L_ln_done")
        for i in range(8): p(f"ds_read_b128 {v(LU+4*i,4)}, v22 offset:{i*1056}")
        p(f"buffer_load_dwordx2 v[{LN_}:{LN_+1}], off, s[{rDbg}:{rDbg+3}], s{sHook} offset:64 sc1")
        for i in range(8):
            p(f"s_waitcnt lgkmcnt({7-i})")
            p(f"buffer_store_dwordx4 {v(LU+4*i,4)}, v23, s[{rWS}:{rWS+3}], s6 offen sc1")
            if i < 7: p("s_add_u32 s6, s6, 32768")
        p("s_waitcnt vmcnt(0)")
        p(f"v_cmp_eq_u32 vcc, 0, v{LN_}"); p("s_cbranch_vccnz L_nonce_wait"); p("L_nonce_ok:")
        p(f"buffer_store_dwordx2 v[{LN_}:{LN_+1}], v{ET+5}, s[{rWS}:{rWS+3}], s7 offen sc1")
        stamp(p, 15)
        p(f"s_cmp_lg_u32 s{sW}, 0"); p("s_cbranch_scc1 L_ln_done")
        p(f"s_and_b32 s7, s7, {~511 & 0xffffffff:#x}"); p("s_mov_b32 s6, 0x100000")
        p("L_xn_wait:")
        p(f"buffer_load_dwordx2 v[{LT}:{LT+1}], v21, s[{rWS}:{rWS+3}], s7 offen sc1")
        p("s_waitcnt vmcnt(0)")
        p(f"v_cmp_ne_u64 vcc, v[{LT}:{LT+1}], v[{LN_}:{LN_+1}]")
        p("s_cbranch_vccz L_ln_done")
        p("s_sub_u32 s6, s6, 1"); p("s_cbranch_scc0 L_xn_wait")
        p("L_ln_done:")
        p("s_barrier")
        stamp(p, 16)
        for j in range(3):
            for b in range(4): p(x_load(j, b, sX0[j]))
    p(f"s_mov_b32 s{sHook}, 0")
    for i in range(128, 192): p(f"v_mov_b32 v{i}, 0")
    p(WV("w0", "x0")); p("s_barrier")
    stamp(p, 1)
    for F in range(3): p(t_read(F, 0)); p(t_read(F, 1))
    p(WL("wf0"))

    kvpre = [[("k", 0), ("k", 1)], [("k", 2), ("v", 0), ("k", 3)], [("v", 1), ("v", 2)]]
    def ph1_step(j, loop_tail=None):
        mf = []; g = [[] for _ in range(60)]
        for n in range(15):
            F = 15 * j + n
            for qb in range(4):
                ac = v(accQ(n, qb), 4) if n < 8 else a_(accH(n - 8, qb), 4)
                mf.append(f"{M16} {ac}, {v(WF + (F % 4) * 4, 4)}, {v(XF + (j % 4) * 16 + 4 * qb, 4)}, {ac}")
            if F + 3 < 15 * 32:
                g[4*n].append(t_read(F + 3, 0)); g[4*n+1].append(t_read(F + 3, 1))
            if F + 1 < 15 * 32:
                g[4*n+3].append(WL(f"wf{F+1}"))
        if j + 2 < 32:
            g[1].insert(0, w_m0(j + 2, 3)); g[2].append(w_dma(j + 2, 3))
        if j + 3 < 32:
            for b in range(4): g[6 + 4 * b].append(x_load(j + 3, b))
            for x, gp in zip(w_off + kk_next, (20, 21, 22, 24, 25, 26, 28, 29, 30, 32)): g[gp].insert(0, x)
            for i in range(3):
                g[49 + 4 * i].insert(0, w_m0(j + 3, i)); g[50 + 4 * i].append(w_dma(j + 3, i))
        else:
            for q, (kind, u) in enumerate(kvpre[j - 29]):
                g0 = 6 + 16 * q
                g[g0 - 2].insert(0, f"s_mov_b32 s{sVo}, {u * 8192}")
                g[g0 - 1].insert(0, k_m0(u) if kind == "k" else v_m0(u))
                for i in range(2):
                    g[g0 + 4 * i].append(k_dma(u, i, sVo) if kind == "k" else v_dma(u, i, sVo))
        if j + 1 < 32:
            g[46].append(WV(f"w{j+1}", f"x{j+1}"))
            g[47].append("s_barrier")
        if j == 28:
            for i in range(4): g[26 + 4 * i].append(VM("fill", f"buffer_store_dwordx4 {v(ET,4)}, v{vSt}, s[{rWS}:{rWS+3}], s{sFill} offen offset:{i*1024} sc1"))
            g[42].append(VM("fill", f"buffer_store_short v{ET+4}, v{ET+5}, s[{rWS}:{rWS+3}], s{sOwn} offen sc1"))
        if j == 31:
            g[51].append(f"v_mov_b32 v{vZ}, v{ET+5}"); g[52].append(f"v_mov_b32 v{vOne}, 1")
            g[54].append(f"v_lshlrev_b32 v{vPo}, 2, v{vLane}"); g[56].append(f"v_mov_b32 v{cGo}, v{vSt}")
        if loop_tail: g[59].extend(loop_tail)
        p.block(mf, g)
    def ph1_body(it):
        p(tr_a())
        for q in range(4):
            if q == 3: p(tr_b(sCnt, 32, vLane))
            ph1_step(4 * it + q, [f"s_sub_u32 s{sCnt}, s{sCnt}, 1", f"s_cmp_lg_u32 s{sCnt}, 0", "s_cbranch_scc1 L_ph1"] if q == 3 else None)
    p.loop(7, ph1_body, "L_ph1", sCnt)
    for j in range(28, 32): ph1_step(j)

    p("s_nop 7")
    stamp(p, 2)
    def k_read(u, s): return DS(f"kf{u}", f"ds_read_b128 {a_(KF(s),4)}, v{vK[s]} offset:{(u % 4) * 8192}")
    p(WV("k0", "k1")); p("s_barrier")
    for s_ in range(8): p(k_read(0, s_))
    p(f"s_mov_b32 s4, {QSCALE:#x}"); p(f"s_mov_b32 s5, {QSCALE:#x}")
    pend = []
    for q in range(2):
        for d in range(8):
            b = accQ(d, 2 * q); f = QF(q, d)
            for e in range(4): p(f"v_pk_mul_f32 {v(b+2*e,2)}, {v(b+2*e,2)}, s[4:5]")
            p(pend)
            for e in range(4): p(f"v_cvt_pk_bf16_f32 v{f+e}, v{b+2*e}, v{b+2*e+1}")
            pend = [f"v_permlane16_swap_b32 v{f}, v{f+2}", f"v_permlane16_swap_b32 v{f+1}, v{f+3}"]
    p("s_nop 1"); p(pend)
    hep = []
    k = 0
    for pr in range(4):
        if 0 < pr < 3: hep.append(f"s_add_u32 s{sHo}, s{sHo}, 8192")
        for qb in range(4):
            b = 16 + (k % 2) * 8; k += 1
            n = 8 if pr < 3 else 4
            for e in range(n): hep.append(f"v_accvgpr_read_b32 v{b+e}, a{accH(2 * pr + e // 4, qb) + e % 4}")
            for e in range(n // 2): hep.append(f"v_cvt_pk_bf16_f32 v{b+e}, v{b+2*e}, v{b+2*e+1}")
            for e in range(n // 2): hep.append(f"v_pk_max_i16 v{b+e}, v{b+e}, 0")
            if pr < 3: hep.append(VM("hst", f"buffer_store_dwordx4 {v(b,4)}, v{vSt}, s[{rWS}:{rWS+3}], s{sHo} offen offset:{qb*1024} sc1"))
            else: hep.append(VM("hst", f"buffer_store_dwordx2 {v(b,2)}, v{vSt}, s[{rWS}:{rWS+3}], s{sHs} offen offset:{qb*1024} sc1"))

    def v_read(u, f, half):
        t, db = divmod(f, 4)
        return DS(f"vf{u}_{t}", f"ds_read_b64_tr_b16 {a_(VF(f) + 2 * half, 2)}, v{vV[db]} offset:{(u % 4) * 8192 + t * 4096 + half * 2048}")
    def qk_mf(u, first_c0=False):
        r = []
        for s in range(8):
            for q in range(2):
                d = v(S(u % 2, q), 16)
                c = ("0" if first_c0 else v(NM(q), 16)) if s == 0 else d
                r.append(f"{M32} {d}, {a_(KF(s),4)}, {v(QF(q,s),4)}, {c}")
        return r
    def pv_mf(u):
        r = []
        for t in range(2):
            for db in range(4):
                for q in range(2):
                    r.append(f"{M32} {a_(O(db,q),16)}, {a_(VF(4*t+db),4)}, {v(P(u % 2, t, q), 4)}, {'0' if (u == 0 and t == 0) else a_(O(db,q),16)}")
        return r
    def rowmax(par, q, dst, tmp):
        s = S(par, q)
        p(f"v_max3_f32 v{dst}, v{s}, v{s+1}, v{s+2}")
        for i in range(3, 15, 2): p(f"v_max3_f32 v{dst}, v{dst}, v{s+i}, v{s+i+1}")
        p(f"v_max_f32 v{dst}, v{dst}, v{s+15}")
        p(f"v_mov_b32 v{tmp}, v{dst}")
        p("s_nop 1")
        p(f"v_permlane32_swap_b32 v{dst}, v{tmp}")
        p(f"v_max_f32 v{dst}, v{dst}, v{tmp}")

    stamp(p, 3)
    p(f"s_mov_b32 s{sKV}, {4*8192}"); p(k_m0(4))
    p(WL("kf0")); p("s_barrier")
    p(k_dma(4, 0, sKV)); p(k_dma(4, 1, sKV))
    mf = qk_mf(0, True); g = [[] for _ in range(16)]
    for s in range(8): g[2 * s + 1].append(k_read(1, s))
    for i in range(16):
        n = 5 if i % 2 else 6
        g[i] += hep[:n]; hep = hep[n:]
    p.block(mf, g)
    p(hep)
    for q in range(2):
        rowmax(0, q, ET, ET + 1)
        p(f"v_sub_f32 v{NM(q)}, 0, v{ET}"); p(f"v_sub_f32 v{NM(q)+1}, 0, v{ET}")
        for i in range(0, 16, 2): p(f"v_pk_add_f32 {v(S(0,q)+i,2)}, {v(S(0,q)+i,2)}, {v(NM(q),2)}")
        for i in range(2, 16, 2): p(f"v_pk_mov_b32 {v(NM(q)+i,2)}, {v(NM(q),2)}, {v(NM(q),2)}")
        p(f"v_mov_b32 v{vL[q]}, 0")
    p(f"s_mov_b32 s{sKV}, {5*8192}")
    p(f"s_mov_b32 s{sVo}, {3*8192}")
    p(WL("kf1"))

    rare_sites = []
    EARLY = 4
    def sm_items(u):
        par = u % 2
        it = []
        order = [(q, 8 * t + r) for t in range(2) for q in range(2) for r in range(8)]
        seen = [0, 0]; prev = [None, None]
        for e, (q, r) in enumerate(order):
            tmp = ET + e % 8; eg = e - EARLY
            it.append((eg, 1, f"v_exp_f32 v{tmp}, v{S(par,q)+r}"))
            ag = eg + 1
            if seen[q] == 0: prev[q] = tmp
            elif seen[q] == 1: it.append((ag, 2, f"v_add_f32 v{vLu[par][q]}, v{prev[q]}, v{tmp}"))
            else: it.append((ag, 2, f"v_add_f32 v{vLu[par][q]}, v{vLu[par][q]}, v{tmp}"))
            seen[q] += 1
            if r % 2 == 1:
                it.append((ag, 3, f"v_cvt_pk_bf16_f32 v{P(par, r // 8, q) + (r % 8) // 2}, v{ET + (e-1) % 8}, v{tmp}"))
        return sorted(it, key=lambda x: (x[0], x[1]))
    def l_adds(u): return [f"v_add_f32 v{vL[q]}, v{vL[q]}, v{vLu[u % 2][q]}" for q in range(2)]
    def slot(u, loop_tail=None, site=None, pf=None, extra=None):
        do_qk = u + 1 < 64; do_pv = u >= 1
        mq = qk_mf(u + 1) if do_qk else [None] * 16
        mp = pv_mf(u - 1) if do_pv else [None] * 16
        mf = mq + mp
        sal = [[] for _ in range(32)]; mem = [[] for _ in range(32)]; val = [[] for _ in range(32)]
        if do_pv:
            for i, gp in enumerate((0, 2, 3, 4, 6, 7, 8, 10, 11, 12)): mem[gp].append(v_read(u - 1, 3 + i // 2, i % 2))
            sal[15].append(WL(f"vf{u-1}_0")); sal[23].append(WL(f"vf{u-1}_1"))
            val[1] += l_adds(u - 1)
        if 0 < u and u + 4 < 64:
            sal[3].append(k_m0(u + 4))
            mem[5].append(k_dma(u + 4, 0, sKV)); mem[9].append(k_dma(u + 4, 1, sKV))
            sal[10].append(f"s_add_u32 s{sKV}, s{sKV}, 8192")
        if 0 < u and u + 2 < 64:
            sal[16].append(v_m0(u + 2))
            mem[17].append(v_dma(u + 2, 0, sVo)); mem[21].append(v_dma(u + 2, 1, sVo))
            sal[22].append(f"s_add_u32 s{sVo}, s{sVo}, 8192")
        if pf == 0:
            mem[25].append(VM("pf", f"buffer_load_dword v{vPfD}, v{vPf}, s[84:87], s{sPo} offen")); sal[26].append(f"s_add_u32 s{sPo}, s{sPo}, 640")
        if pf == 2:
            mem[25].append(VM("pf", f"buffer_load_dword v{vPfD}, v{vPf}, s[88:91], s{sP2} offen")); sal[26].append(f"s_add_u32 s{sP2}, s{sP2}, 512")
        tags = [f"v{u}"] + ([f"k{u+2}"] if u + 2 < 64 else [])
        sal[12].append(WV(*tags))
        sal[13].append("s_barrier")
        if u + 2 < 64:
            for s, gp in enumerate((14, 15, 16, 18, 19, 20, 22, 23)): mem[gp].append(k_read(u + 2, s))
            sal[31].append(WL(f"kf{u+2}"))
        for i, gp in enumerate((24, 26, 27, 28, 30, 31)): mem[gp].append(v_read(u, i // 2, i % 2))
        for gp, pri, txt in sm_items(u):
            if gp >= 0: val[gp].insert(len(val[gp]) - (2 if gp == 1 and do_pv else 0), txt)
        if do_qk:
            for gp, pri, txt in sm_items(u + 1):
                if gp < 0: val[32 + gp].insert(0 if pri == 1 else len(val[32 + gp]), txt)
        val[33 - EARLY].append(f"v_max_f32 v{vTmp}, v{vLu[u % 2][0]}, v{vLu[u % 2][1]}")
        val[33 - EARLY].append(f"v_cmp_nge_f32 vcc, s{sThr}, v{vTmp}")
        lab = site if site else f"{u}"
        post = [f"s_cbranch_vccnz L_rare_{u % 2}", f"L_back_{lab}:"]
        if (lab, u % 2, bool(loop_tail)) not in rare_sites: rare_sites.append((lab, u % 2, bool(loop_tail)))
        sal[27].append(f"s_mov_b32 s{sSite}, {rare_sites.index((lab, u % 2, bool(loop_tail)))}")
        if loop_tail:
            sal[29].append(loop_tail[0]); post.append(loop_tail[1])
        for i in range(32):
            if mf[i]: p(mf[i])
            p(sal[i] + mem[i] + val[i] + (extra[i] if extra else []))
        p(post)
    p("s_barrier")
    for gp, pri, txt in sm_items(0):
        if gp < 0: p(txt)
    slot(0); slot(1)
    def att_body(it):
        p(tr_a())
        for q in range(4):
            if q == 3 and PROF: p(tr_b(101, 1, vLane)); p("s_sub_u32 s101, s101, 1")
            slot(2 + 4 * it + q, [f"s_sub_u32 s{sCnt}, s{sCnt}, 1", "s_cbranch_scc0 L_att"] if q == 3 else None, site=f"l{q}", pf=q)
    if PROF: p("s_mov_b32 s101, 13")
    p.loop(14, att_body, "L_att", sCnt, init=0)
    p(f"s_cmp_eq_u32 s{sHook}, 0"); p("s_cbranch_scc1 L_hook")

    AHEAD = 6; NS = 128
    def ring(j): return (j + 4) % 8
    def m0(j): return f"s_mov_b32 m0, s{sM + ring(j)}"
    def dma(j, i, r=rAct, so=None):
        if i < 2: return VM(f"d{j}", f"buffer_load_dwordx4 v{cWd[i]}, s[{rW}:{rW+3}], s{sWo} offen offset:{i*1024} lds")
        return VM(f"d{j}", f"buffer_load_dwordx4 v{cAd}, s[{r}:{r+3}], s{(sA, sAn)[j % 2] if so is None else so} offen offset:{i*1024} sc1 lds")
    def adv(jn):
        d = (sA, sAn)[jn % 2]
        return [f"s_add_u32 s{sR}, s{sR}, 8192", f"s_and_b32 s{sR}, s{sR}, {7 * 8192:#x}", f"s_add_u32 s{d}, s{sR}, s{sBase}", f"s_lshl3_add_u32 s{sWo}, s{d}, s{sK}"]
    def poll(): return VM("poll", f"buffer_load_dword v{vFl}, v{vPo}, s[{rWS}:{rWS+3}], s{sFl} offen sc1")
    def publish(): return VM("pub", f"buffer_store_short v{vOne}, v{vZ}, s[{rWS}:{rWS+3}], s{sOwn} offen sc1")
    flag_cmp = f"v_cmp_eq_u32 vcc, v{vExp}, v{vFl}"
    flag_test = f"s_andn2_b64 s[4:5], s[{sMask}:{sMask+1}], vcc ; scc=flag"
    mask_next = f"s_lshl_b64 s[{sMask}:{sMask+1}], s[{sMask}:{sMask+1}], 2"
    cnt_load = f"buffer_load_dword v{vDb}, v{vPo}, s[{rDbg}:{rDbg+3}], 0 offen sc1"
    cnt_test = [f"v_cmp_eq_u32 vcc, 32, v{vDb}", "s_nop 0", "s_and_b32 s4, vcc_lo, 0xff", "s_cmp_eq_u32 s4, 0xff"]
    role1 = [VM("cnt", cnt_load),
        "s_bfe_u32 s17, s2, 0x10002", "s_bfe_u32 s5, s2, 0x30003", "s_lshl3_add_u32 s17, s17, s5",
        "s_bfe_u32 s18, s2, 0x10001", "s_lshr_b32 s5, s2, 6", "s_lshl2_add_u32 s18, s18, s5",
        f"v_bfe_u32 v{vTbl}, v{vLane}, 1, 2", f"v_bfe_u32 v{vFl}, v{vLane}, 3, 1", f"v_lshl_add_u32 v{vTbl}, v{vTbl}, 1, v{vFl}", f"v_add_u32 v{vTbl}, s2, v{vTbl}",
        f"v_and_b32 v{vTbl}, 7, v{vTbl}", f"v_and_b32 v{vFl}, 1, v{vLane}", f"v_lshl_add_u32 v{vTbl}, v{vTbl}, 1, v{vFl}",
        "s_lshl3_add_u32 s5, s17, s18", "s_lshl_b32 s5, s5, 15", f"s_lshl1_add_u32 s{sG}, s{sM}, s5", f"s_add_u32 s{sG}, s{sG}, {G_BASE:#x}",
        "s_lshl_b32 s5, s17, 18", "s_lshl_b32 s6, s18, 8", f"s_add_u32 s{sXt}, s5, s6",
        "s_lshl1_add_u32 s5, s18, s17", "s_and_b32 s5, s5, 7", f"s_lshl_b32 s{sR}, s5, 13", f"s_mov_b32 s{sR0}, s{sR}",
        "s_lshl_b32 s7, s17, 7", f"s_add_u32 s7, s7, {FLAG_BASE:#x}",
        f"s_mov_b32 s{rAE}, s60", f"s_and_b32 s{rAE+1}, s61, 0xffff", f"s_mov_b32 s{rAE+3}, 0x20000", f"s_mov_b32 s{rW+3}, 0x20000",
        f"s_mov_b32 s19, {OOR:#x}", f"s_mov_b32 s{sB0}, {H_BASE - 2048:#x}", f"s_mov_b32 s{sWin}, 0", f"s_mov_b64 s[{sMask}:{sMask+1}], 3"]
    role2 = [f"s_bitcmp0_b32 s2, 0", f"s_cselect_b64 s[4:5], -1, 0", f"s_cselect_b32 s{sTy}, 1, 0",
        f"s_cselect_b32 s{rW}, s62, s64", f"s_cselect_b32 s{rW+1}, s63, s65",
        f"v_cndmask_b32 v{vTbl}, v{vLane}, v{vTbl}, s[4:5]",
        f"s_cselect_b32 s{sFl}, s7, s19", f"s_cselect_b32 s{sGl}, s{sG}, s19",
        f"s_cselect_b32 s{rAE+2}, 0, {WS_BYTES:#x}", f"s_cselect_b32 s{rW+2}, s86, s90",
        f"s_cselect_b32 s4, 16, 14", f"s_cselect_b32 s5, {O_BASE - 2048:#x}, s{sB0}", "s_cselect_b32 s7, 0, 28"]
    role2 = [x + " ; scc=role" if x.startswith("s_") else x for x in role2]
    role3 = ["s_mul_i32 s4, s4, s17", "s_lshl_b32 s4, s4, 16", f"s_add_u32 s{sB0}, s4, s5",
        f"s_and_b32 s{rW+1}, s{rW+1}, 0xffff",
        f"s_lshl_b32 s5, s{sB0}, 3", f"s_sub_u32 s{sK}, s6, s5",
        f"v_cmp_gt_u32 vcc, s7, v{vLane}", f"v_mov_b32 v{vExp}, 0x10001", f"v_lshrrev_b32 v{vFl}, 1, v{vLane}", f"v_cndmask_b32 v{vExp}, v{vExp}, 0, vcc",
        f"v_lshlrev_b32 v{vFl}, 2, v{vFl}", DS("perm", f"ds_bpermute_b32 v{vFl}, v{vFl}, v{vTbl}"),
        f"v_lshlrev_b32 v{vTbl}, 16, v{vTbl}", f"v_add_u32 v{vTbl}, s{sB0}, v{vTbl}", f"v_cmp_gt_u32 vcc, 32, v{vLane}"]
    role4 = [[WV("cnt"), cnt_test[0]], [cnt_test[2], cnt_test[3], "s_cbranch_scc0 L_cnt_wait", "L_cnt_ok:"],
        f"v_readlane_b32 s{sBase}, v{vTbl}, 0", f"v_and_b32 v{vPo}, 4, v{vPo}", [WL("perm"), f"v_lshl_add_u32 v{vPo}, v{vFl}, 3, v{vPo}"],
        f"v_cmp_gt_u32 vcc, 32, v{vLane}", f"v_mov_b32 v{vFl}, {OOR:#x}",
        f"s_add_u32 s{sA}, s{sR}, s{sBase}", f"v_cndmask_b32 v{vPo}, v{vFl}, v{vPo}, vcc", f"s_lshl3_add_u32 s{sWo}, s{sA}, s{sK}", f"v_mov_b32 v{vFl}, 0", m0(0)]
    role3 = role3[:-1]
    ex = {u: [[] for _ in range(32)] for u in range(58, 64)}
    spread(ex[58], [unpark(r) for r in park_early] + role1[:18], [1, 2, 4, 5, 6, 7, 8, 9, 11, 13, 14, 15, 17, 18, 19, 20, 21, 23, 24, 25, 26, 27])
    spread(ex[59], role1[18:], [1, 2, 4, 5, 6, 7, 9, 11, 13, 14, 15, 17, 19, 21, 23, 25, 27])
    spread(ex[60], role2 + role3, [0, 1, 2, 3, 4, 5, 6, 7, 8, 9, 10, 11, 14] + [15, 17, 18, 19, 20, 21, 22, 23, 24, 25, 26, 27, 28, 29])
    spread(ex[61], role4, [1, 3, 5, 6, 7, 8, 9, 10, 11, 14, 18, 25])
    pro = []
    for j in range(AHEAD):
        ad = adv(j + 1)
        pro.append([dma(j, i, rAE) for i in range(4)] + [ad[0], m0(j + 1)] + ad[1:])
    spread(ex[62], pro[0] + pro[1], [1, 2, 5, 9, 14, 15, 16, 17, 18, 19, 20, 21, 22, 23, 24, 25, 26, 27])
    spread(ex[63], [unpark(r) for r in park_late], list(range(16, 27)))
    stamp(p, 12)
    for u in range(58, 64):
        if u == 62: stamp(p, 13)
        slot(u, extra=ex[u])
    for f in range(3, 8):
        for hf in range(2): p(v_read(63, f, hf))
    p(l_adds(63))
    mp = pv_mf(63)
    p(WL("vf63_0"))
    rest = sum(pro[2:], [])
    for i in range(16):
        if i == 8: p(WL("vf63_1"))
        p(mp[i])
        n = 3 if i < 4 else 2
        p(rest[:n]); rest = rest[n:]
    assert not rest
    stamp(p, 4)
    for q in range(2):
        p(f"v_mov_b32 v16, v{vL[q]}")
        p("s_nop 1")
        p(f"v_permlane32_swap_b32 v{vL[q]}, v16")
        p(f"v_add_f32 v{vL[q]}, v{vL[q]}, v16")
        p(f"v_rcp_f32 v{vL[q]}, v{vL[q]}")
    p(f"""v_bfe_u32 v16, v{vLane}, 4, 1
    v_bfe_u32 v17, v{vLane}, 5, 1
    v_and_b32 v18, 15, v{vLane}
    v_lshlrev_b32 v18, 4, v18
    v_lshl_add_u32 v18, v16, 9, v18
    v_lshl_add_u32 v{vSt}, v17, 8, v18
    s_nop 4""")
    k = 0
    for db in range(4):
        if db: p(f"s_add_u32 s{sOo}, s{sOo}, 8192")
        for q in range(2):
            b = 16 + (k % 2) * 32; k += 1
            for r in range(16): p(f"v_accvgpr_read_b32 v{b+r}, a{O(db,q)+r}")
            for r in range(0, 16, 2): p(f"v_pk_mul_f32 {v(b+r,2)}, {v(b+r,2)}, {v(vL[0],2)} op_sel:[0,{q}] op_sel_hi:[1,{q}]")
            dst = {0: 0, 1: 1, 4: 2, 5: 3, 2: 4, 3: 5, 6: 6, 7: 7}
            for c in range(8): p(f"v_cvt_pk_bf16_f32 v{b+16+dst[c]}, v{b+2*c}, v{b+2*c+1}")
            p("s_nop 0")
            for c in range(4): p(f"v_permlane16_swap_b32 v{b+16+c}, v{b+20+c}")
            p(VM("ost", f"buffer_store_dwordx4 {v(b+16,4)}, v{vSt}, s[{rWS}:{rWS+3}], s{sOo} offen offset:{2*q*1024} sc1"))
            p(VM("ost", f"buffer_store_dwordx4 {v(b+20,4)}, v{vSt}, s[{rWS}:{rWS+3}], s{sOo} offen offset:{(2*q+1)*1024} sc1"))
    stamp(p, 5)

    def b_read(j, i):
        hi, o = divmod(ring(j) * 16384, 65536)
        return DS(f"b{j}", f"ds_read_b128 {v(BF(j % 2, i), 4)}, v{cA[hi]} offset:{o + (i // 2) * 4096 + (i % 2) * 1024}")
    def a_read(j, i, half):
        hi, o = divmod(ring(j) * 16384, 65536)
        return DS(f"a{j}_{i}", f"ds_read_b64_tr_b16 {v(AF(j % 2, i) + 2 * half, 2)}, v{cT[hi][i]} offset:{o + half * 8192}")
    def g_load(k): return VM("g", f"buffer_load_dwordx4 {v(GR + 4 * k, 4)}, v{cGo}, s[{rAct}:{rAct+3}], s{sGl} offen offset:{(k % 4)*1024} sc1")
    def step(j, loop_tail=None):
        mf = [f"{M16} {v(acc(nb, rb), 4)}, {v(AF(j % 2, nb), 4)}, {v(BF(j % 2, rb), 4)}, {'0' if j == 0 else v(acc(nb, rb), 4)}" for nb in range(4) for rb in range(4)]
        sal = [[] for _ in range(16)]; g = [[] for _ in range(16)]
        g[1].append(a_read(j, 3, 0)); g[2].append(a_read(j, 3, 1))
        if j + 1 < NS:
            for i, gp in enumerate((3, 5, 6, 7)): g[gp].append(b_read(j + 1, i))
            for i, gp in enumerate((9, 10, 11, 13, 14, 15)): g[gp].append(a_read(j + 1, i // 2, i % 2))
        if j + AHEAD < NS:
            for i in range(4): g[4 * i].append(dma(j + AHEAD, i))
        elif j in (122, 123):
            if j == 123: sal[0].append(f"s_add_u32 s{sGl}, s{sGl}, 4096")
            for k in range(4): g[4 * k].append(g_load(4 * (j - 122) + k))
        if j % 8 == 1 and j + 1 + AHEAD <= NS:
            sal[1].append(f"s_add_u32 s{sWin}, s{sWin}, 1"); sal[2].append(f"v_readlane_b32 s{sBase}, v{vTbl}, s{sWin}")
            sal[4].append(mask_next)
            if j > 1: sal[8].append(WV("poll"))
            sal[8].append(flag_cmp); sal[12].append(flag_test)
        if j % 8 == 4 and j < 122: g[13].append(poll())
        if j + 1 + AHEAD <= NS:
            for x, gp in zip(adv(j + 1 + AHEAD), (5, 6, 9, 10)): sal[gp].append(x)
            sal[14].append(m0(j + 1 + AHEAD))
        sal[3].append(WL(f"a{j}_1")); sal[7].append(WL(f"a{j}_2")); sal[11].append(WL(f"a{j}_3"))
        post = []
        if j + 1 < NS:
            sal[15].append(WL(f"a{j+1}_0"))
            if j % 2 == 0 and j + 2 < NS:
                post.append(WV(f"d{j+2}", f"d{j+3}") if j + 3 < NS else WV(f"d{j+2}"))
                post.append("s_barrier")
        if loop_tail: post.append(loop_tail)
        g[15].extend(post)
        p.block(mf, [x + y for x, y in zip(sal, g)])
    def first2():
        p(WV("d0", "d1")); p("s_barrier")
        stamp(p, 6)
        for i in range(4): p(b_read(0, i))
        for i in range(3): p(a_read(0, i, 0)); p(a_read(0, i, 1))
        p(WL("a0_0"))
        step(0); step(1)
    if PROF: p(f"s_mov_b32 s{sCnt}, 14")
    p(f"s_cmp_lg_u32 s{sTy}, 0"); p("s_cbranch_scc1 L_c_late")
    vm0, ds0 = list(p.vm), list(p.ds)
    first2()
    p(WV("ost")); p(publish()); p("s_branch L_c_loop")
    p.vm, p.ds = vm0, ds0
    p("L_c_late:")
    p(poll())
    def x_loads():
        for rb in range(4):
            p(f"s_add_u32 s4, s{sXt}, {rb * 16 * 2048}")
            for nb in range(4): p(VM("x", f"buffer_load_dwordx2 {v(XR + (nb * 4 + rb) * 2, 2)}, v{cXo}, s[{rX}:{rX+3}], s4 offen offset:{nb*32}"))
    if "xearly" in opt: x_loads()
    p(WV("poll")); p(publish())
    stamp(p, 10)
    if "allpoll" not in opt:
        p(f"s_cmp_lg_u32 s{sW}, 0"); p("s_cbranch_scc1 L_spun_0")
    p(flag_cmp); p("s_nop 0"); p(flag_test); p("s_cbranch_scc1 L_spin_0 ; scc=flag"); p("L_spun_0:")
    if "allpoll" not in opt: p("s_barrier")
    stamp(p, 11)
    for j in range(AHEAD):
        p(m0(j)); p(f"s_add_u32 s4, s{sR0}, s{sBase}")
        p(dma(j, 2, so=4)); p(dma(j, 3, so=4))
        p(f"s_add_u32 s{sR0}, s{sR0}, 8192"); p(f"s_and_b32 s{sR0}, s{sR0}, {7*8192:#x}")
    p(m0(AHEAD))
    if "xearly" not in opt: x_loads()
    first2()
    p("s_cbranch_scc1 L_spin_l ; scc=flag")
    def body(it):
        p(tr_a())
        for q in range(8):
            if q == 6 and PROF: p(tr_b(sCnt, 40, vLane)); p(f"s_sub_u32 s{sCnt}, s{sCnt}, 1")
            step(2 + 8 * it + q, "s_cbranch_scc0 L_c_loop ; scc=flag" if q == 7 else None)
    p.loop(15, body, "L_c_loop", None)
    p(f"s_lshl1_add_u32 s4, s{sTy}, 14"); p(f"s_cmp_lg_u32 s{sWin}, s4"); p("s_cbranch_scc1 L_spin_l")
    for j in range(122, 128): step(j)
    p("s_nop 7")
    stamp(p, 7)
    p(f"s_cmp_lg_u32 s{sTy}, 0")
    p("s_cbranch_scc1 L_c_s")
    p(f"s_mov_b32 s4, {f32(-1.4426950408889634):#x}"); p("s_mov_b32 s5, s4")
    p("s_mov_b32 s6, 1.0"); p("s_mov_b32 s7, 1.0")
    k = 0
    for rb in range(4):
        for np_ in range(2):
            b = 16 + (k % 2) * 8
            src = [acc(2 * np_ + e // 2, rb) + 2 * (e % 2) for e in range(4)]
            for e in range(4): p(f"v_pk_mul_f32 {v(b+2*e,2)}, {v(src[e],2)}, s[4:5]")
            for e in range(8): p(f"v_exp_f32 v{b+e}, v{b+e}")
            for e in range(4): p(f"v_pk_add_f32 {v(b+2*e,2)}, {v(b+2*e,2)}, s[6:7]")
            for e in range(8): p(f"v_rcp_f32 v{b+e}, v{b+e}")
            for e in range(4): p(f"v_pk_mul_f32 {v(b+2*e,2)}, {v(b+2*e,2)}, {v(src[e],2)}")
            for e in range(4): p(f"v_cvt_pk_bf16_f32 v{b+e}, v{b+2*e}, v{b+2*e+1}")
            for e in range(4): p(f"v_min_u32 v{b+e}, -2, v{b+e}")
            if k == 4: p(f"s_add_u32 s{sG}, s{sG}, 4096")
            p(VM("g", f"buffer_store_dwordx4 {v(b,4)}, v{cGo}, s[{rAct}:{rAct+3}], s{sG} offen offset:{(k % 4)*1024} sc1"))
            k += 1
    stamp(p, 8)
    prof_out(p, 1, 9, rWS, sTy)
    p("s_endpgm")
    p("L_c_s:")
    p("s_mov_b32 s6, 0x100000")
    p("L_c_chk:")
    p("s_waitcnt vmcnt(0)")
    p(f"v_max3_u32 v16, v{GR}, v{GR+1}, v{GR+2}")
    p(f"v_max3_u32 v17, v{GR+3}, v{GR+4}, v{GR+5}")
    for i in range(6, 30, 4):
        p(f"v_max3_u32 v16, v{GR+i}, v{GR+i+1}, v16"); p(f"v_max3_u32 v17, v{GR+i+2}, v{GR+i+3}, v17")
    p(f"v_max3_u32 v16, v{GR+30}, v{GR+31}, v16")
    p("v_max_u32 v16, v16, v17")
    p("v_cmp_eq_u32 vcc, -1, v16")
    p("s_cbranch_vccz L_c_go")
    p("s_sub_u32 s6, s6, 1")
    p("s_cbranch_scc1 L_c_go")
    p(f"s_mov_b32 s{sGl}, s{sG}")
    for k in range(8):
        if k == 4: p(f"s_add_u32 s{sGl}, s{sGl}, 4096")
        p(g_load(k))
    p("s_branch L_c_chk")
    p("L_c_go:")
    stamp(p, 8)
    k = 0
    for rb in range(4):
        p(f"s_add_u32 s4, s{sXt}, {rb * 16 * 2048}")
        for np_ in range(2):
            b = 16 + (k % 2) * 16
            for e in range(4):
                gr = GR + 4 * k + e
                xr = XR + ((2 * np_ + e // 2) * 4 + rb) * 2 + e % 2
                p(f"v_lshlrev_b32 v{b+2*e}, 16, v{gr}")
                p(f"v_and_b32 v{b+2*e+1}, 0xffff0000, v{gr}")
                p(f"v_lshlrev_b32 v{b+8+2*e}, 16, v{xr}")
                p(f"v_and_b32 v{b+8+2*e+1}, 0xffff0000, v{xr}")
            for e in range(4):
                src = acc(2 * np_ + e // 2, rb) + 2 * (e % 2)
                p(f"v_pk_fma_f32 {v(b+2*e,2)}, {v(src,2)}, {v(b+2*e,2)}, {v(b+8+2*e,2)}")
            for e in range(4): p(f"v_cvt_pk_bf16_f32 v{b+e}, v{b+2*e}, v{b+2*e+1}")
            p("s_nop 0")
            p(f"v_permlane16_swap_b32 v{b}, v{b+2}"); p(f"v_permlane16_swap_b32 v{b+1}, v{b+3}")
            p(VM("o", f"buffer_store_dwordx4 {v(b,4)}, v{cOo}, s[{rOut}:{rOut+3}], s4 offen offset:{np_*64}"))
            k += 1
    prof_out(p, 1, 9, rWS, sTy)
    p("L_end:")
    p("s_endpgm")
    errs = check(p.trace, "main") + scc_check(p.trace, "main")

    p.trace = []
    for site, back in (("0", "L_spun_0"), ("l", "L_c_loop")):
        p(f"L_spin_{site}:"); p("s_mov_b32 s7, 0x100000")
        p(f"L_spin2_{site}:")
        if "back" in opt:
            for i in range(8): p("s_nop 15")
        p(poll().text); p("s_waitcnt vmcnt(0)"); p(flag_cmp); p("s_nop 0"); p(flag_test); p(f"s_cbranch_scc0 {back} ; scc=flag")
        p("s_sub_u32 s7, s7, 1"); p(f"s_cbranch_scc0 L_spin2_{site}"); p(f"s_branch {back}")
    p("L_cnt_wait:"); p("s_mov_b32 s7, 0x100000")
    p("L_cnt_wait2:"); p(cnt_load); p("s_waitcnt vmcnt(0)"); p(cnt_test); p("s_cbranch_scc1 L_cnt_ok")
    p("s_sub_u32 s7, s7, 1"); p("s_cbranch_scc0 L_cnt_wait2"); p("s_branch L_cnt_ok")
    if not LNK:
        p("L_nonce_wait:"); p("s_mov_b32 s6, 0x100000")
        p("L_nonce_wait2:"); p(f"buffer_load_dwordx2 v[{LN_}:{LN_+1}], off, s[{rDbg}:{rDbg+3}], s{sHook} offset:64 sc1"); p("s_waitcnt vmcnt(0)")
        p(f"v_cmp_eq_u32 vcc, 0, v{LN_}"); p("s_cbranch_vccz L_nonce_ok")
        p("s_sub_u32 s6, s6, 1"); p("s_cbranch_scc0 L_nonce_wait2"); p("s_branch L_nonce_ok")
    p("L_hook:")
    p.c("H, the g fill and the flag reset of every wave of this workgroup have reached memory: wave 0 counts the workgroup in")
    p(f"s_and_b32 s4, s2, 7"); p("s_lshl_b32 s4, s4, 2"); p(f"s_cmp_eq_u32 s{sW}, 0"); p(f"s_cselect_b32 s4, s4, {OOR:#x}")
    p(f"s_mov_b32 s{sHook}, 1"); p(f"s_mov_b32 s{sCnt}, 12")
    p(f"buffer_atomic_add v{vOne}, v{vZ}, s[{rDbg}:{rDbg+3}], s4 offen sc1")
    p("s_branch L_att")
    errs += check(p.trace, "hooks") + scc_check(p.trace, "hooks")
    for par in range(2):
        p.trace = []
        p.label(f"L_rare_{par}")
        p("s_nop 15")
        for q in range(2):
            rowmax(par, q, 16, 17)
            p("v_max_f32 v16, 0, v16")
            p("v_sub_f32 v17, 0, v16")
            p("v_exp_f32 v17, v17")
            for i in range(16):
                p(f"v_sub_f32 v{S(par,q)+i}, v{S(par,q)+i}, v16")
                p(f"v_sub_f32 v{S(1-par,q)+i}, v{S(1-par,q)+i}, v16")
                p(f"v_sub_f32 v{NM(q)+i}, v{NM(q)+i}, v16")
            p(f"v_mul_f32 v{vL[q]}, v{vL[q]}, v17")
            for db in range(4):
                for r in range(0, 16, 4):
                    for e in range(4): p(f"v_accvgpr_read_b32 v{20+e}, a{O(db,q)+r+e}")
                    for e in range(4): p(f"v_mul_f32 v{20+e}, v{20+e}, v17")
                    for e in range(4): p(f"v_accvgpr_write_b32 a{O(db,q)+r+e}, v{20+e}")
            for hb in range(2):
                for i in range(8): p(f"v_exp_f32 v{24+i}, v{S(par,q)+8*hb+i}")
                p("s_nop 0")
                if hb == 0: p(f"v_add_f32 v{vLu[par][q]}, v24, v25")
                for i in range(2 if hb == 0 else 0, 8): p(f"v_add_f32 v{vLu[par][q]}, v{vLu[par][q]}, v{24+i}")
                for i in range(4): p(f"v_cvt_pk_bf16_f32 v{P(par, hb, q) + i}, v{24+2*i}, v{25+2*i}")
        for gp, pri, txt in sm_items(par + 1):
            if gp < 0: p(txt); p("s_nop 0")
        mine = [(i, x) for i, x in enumerate(rare_sites) if x[1] == par]
        for i, (lab, _, lt) in mine:
            if lt: continue
            p(f"s_cmp_eq_u32 s{sSite}, {i}"); p(f"s_cbranch_scc1 L_back_{lab}")
        lts = [x for _, x in mine if x[2]]
        if lts:
            p(f"s_cmp_eq_u32 s{sCnt}, -1"); p(f"s_branch L_back_{lts[0][0]}")
        else:
            p("s_endpgm")
        errs += check(p.trace, f"rare{par}")
    p.trace = []
    return p, desc(name, 512, 102, 256), errs

def main(fn, opt=()):
    global PROF
    PROF = "prof" in opt
    pl, dl = gen_ln(opt)
    pa, da, ea = gen_main(opt)
    errs = check(pl.trace, "ln") + ea
    for e in errs[:40]: print("HAZARD", e)
    hdr = open("cdna_kernels/" + KN + ".s.ref").read().split("; Override")[0]
    if "lnk" in opt:
        hdr += "; @launch kernel=ln_kernel grid=(256,1,1) block=(512,1,1) lds=0\n"
        hdr += "; @launch kernel=main_kernel grid=(256,1,1) block=(256,1,1) lds=131072\n"
    else:
        hdr += "; @launch grid=(256,1,1) block=(256,1,1) lds=131072\n"
    hdr += '.amdgcn_target "amdgcn-amd-amdhsa--gfx950"\n.text\n'
    if "lnk" in opt: s = hdr + pl.text() + pa.text() + '.section .rodata,"a"\n' + "".join(".p2align 6\n" + d for d in (dl, da))
    else: s = hdr + pa.text() + '.section .rodata,"a"\n.p2align 6\n' + da
    open(fn, "w").write(s)
    print(f"wrote {fn}: {len(s)} bytes, hazards: {len(errs)}")

if __name__ == "__main__":
    main(sys.argv[1] if len(sys.argv) > 1 else "k.s", sys.argv[2:])
```
